```python
import torch

def _softmax(x, axis=-1):
    return torch.softmax(x, dim=axis)
def _gelu(x):
    return torch.nn.functional.gelu(x, approximate="tanh")
def _silu(x):
    return torch.nn.functional.silu(x)
def _sigmoid(x):
    return torch.sigmoid(x)
def _layernorm(x, axis=-1, eps=1e-5):
    m = x.mean(dim=axis, keepdim=True)
    v = x.var(dim=axis, keepdim=True, unbiased=False)
    return (x - m) / torch.sqrt(v + eps)
def _scatter_add(tgt, idx, src, axis=0):
    return tgt.clone().index_add_(axis, idx, src)
def _segment_sum(src, seg, n):
    out = torch.zeros((n,) + src.shape[1:], dtype=src.dtype)
    return out.index_add_(0, seg, src)
def _pad(x, pw):
    flat = tuple(v for pair in reversed(pw) for v in pair)
    return torch.nn.functional.pad(x, flat)

kernel_name = 'parallel_sum__sliding_block__glu_gated_swiglu__prompt'

def setup_inputs():

    _w = (lambda a: (lambda t: t.to(torch.bfloat16) if t.is_floating_point() else t)(torch.as_tensor(a)))
    def _A_setup():
        B, S, D = 1, 2048, 1024
        return {
            "x": _w((lambda *s: torch.randn(*s, dtype=torch.bfloat16) * 0.05)(B, S, D)),
            "wqkv": _w((lambda *s: torch.randn(*s, dtype=torch.bfloat16) * 0.05)(D, 3 * D)),
            "wo": _w((lambda *s: torch.randn(*s, dtype=torch.bfloat16) * 0.05)(D, D)),
        }
    _A_in = _A_setup()

    def _B_setup():
        B, S, D, F = 1, 2048, 1024, 3584
        return {
            "x": _w((lambda *s: torch.randn(*s, dtype=torch.bfloat16) * 0.05)(B, S, D)),
            "w1": _w((lambda *s: torch.randn(*s, dtype=torch.bfloat16) * 0.8)(D, F) * (2.0 / D) ** 0.5),
            "w3": _w((lambda *s: torch.randn(*s, dtype=torch.bfloat16) * 0.8)(D, F) * (2.0 / D) ** 0.5),
            "w2": _w((lambda *s: torch.randn(*s, dtype=torch.bfloat16) * 0.8)(F, D) * (2.0 / F) ** 0.5),
        }
    _B_in = _B_setup()

    return {
        "A_x": _A_in["x"],
        "A_wqkv": _A_in["wqkv"],
        "A_wo": _A_in["wo"],
        "B_x": _B_in["x"],
        "B_w1": _B_in["w1"],
        "B_w3": _B_in["w3"],
        "B_w2": _B_in["w2"],
    }

def reference(A_x, A_wqkv, A_wo, B_x, B_w1, B_w3, B_w2):
    def _A_ref(x, wqkv, wo):
        B, S, D = x.shape
        H = 32; Dh = D // H; W = 256
        qkv = (lambda x, *d: x.permute(*d))((x @ wqkv).reshape(B, S, 3, H, Dh), 2, 0, 3, 1, 4)
        q, k, v = qkv[0], qkv[1], qkv[2]
        scores = torch.einsum("bhqd,bhkd->bhqk", q, k) * (Dh ** -0.5)
        idx = torch.arange(S)
        mask = (idx[:, None] - idx[None, :] >= 0) & (idx[:, None] - idx[None, :] < W)
        scores = torch.where(mask[None, None], scores, -1e9)
        p = _softmax(scores, axis=-1)
        o = torch.einsum("bhqk,bhkd->bhqd", p, v)
        return (lambda x, *d: x.permute(*d))(o, 0, 2, 1, 3).reshape(B, S, D) @ wo

    def _B_ref(x, w1, w3, w2):
        gate = torch.einsum("bsd,df->bsf", x, w1)
        up = torch.einsum("bsd,df->bsf", x, w3)
        h = _silu(gate) * up
        out = torch.einsum("bsf,fd->bsd", h, w2)
        return out

    x = A_x
    xn = _layernorm(x, axis=-1)
    return x + _A_ref(xn, A_wqkv, A_wo) + _B_ref(xn, B_w1, B_w3, B_w2)
```

```python
class Asm:
    def __init__(self):
        self.lines = []
        self.uid = 0
    def __call__(self, s):
        for l in s.split("\n"):
            l = l.strip()
            if l:
                self.lines.append(("" if l.endswith(":") else "    ") + l)
    def label(self, name):
        self.lines.append(name + ":")
    def newlabel(self, base="L"):
        self.uid += 1
        return f"{base}_{self.uid}"
    def comment(self, s):
        self.lines.append("    ; " + s)
    def text(self):
        return "\n".join(self.lines) + "\n"

def v(i, n=1):
    return f"v{i}" if n == 1 else f"v[{i}:{i+n-1}]"
def a(i, n=1):
    return f"a{i}" if n == 1 else f"a[{i}:{i+n-1}]"
def s(i, n=1):
    return f"s{i}" if n == 1 else f"s[{i}:{i+n-1}]"
def r(i, n=1):
    if i >= 256:
        return a(i - 256, n)
    assert i + n <= 256, (i, n)
    return v(i, n)

def kernel_header(name):
    return f""".text
.globl {name}
.p2align 8
.type {name},@function
{name}:
"""
def kernel_desc(name, vgpr=512, accum=256, sgpr=102, extra=""):
    return f""".section .rodata,"a"
.p2align 6
.amdhsa_kernel {name}
  .amdhsa_next_free_vgpr {vgpr}
  .amdhsa_next_free_sgpr {sgpr}
  .amdhsa_accum_offset {accum}
  .amdhsa_group_segment_fixed_size 0
  .amdhsa_kernarg_size 80
  .amdhsa_user_sgpr_count 2
  .amdhsa_user_sgpr_kernarg_segment_ptr 1
  .amdhsa_system_sgpr_workgroup_id_x 1
  .amdhsa_float_denorm_mode_32 3
{extra}.end_amdhsa_kernel
"""
TARGET = '.amdgcn_target "amdgcn-amd-amdhsa--gfx950"\n'
```

```python
import re
TRANS = ("v_exp_f32", "v_log_f32", "v_rcp_f32", "v_rsq_f32", "v_sqrt_f32", "v_sin_f32", "v_cos_f32")
def regs(tok):
    tok = tok.strip()
    tok = tok.lstrip("-")
    if tok.startswith("abs("): tok = tok[4:-1]
    if tok.startswith("|"): tok = tok.strip("|")
    m = re.fullmatch(r"([vas])(\d+)", tok)
    if m: return {(m.group(1), int(m.group(2)))}
    m = re.fullmatch(r"([vas])\[(\d+):(\d+)\]", tok)
    if m: return {(m.group(1), i) for i in range(int(m.group(2)), int(m.group(3)) + 1)}
    if tok == "vcc": return {("s", "vcc")}
    if tok in ("vcc_lo", "vcc_hi"): return {("s", "vcc")}
    if tok == "m0": return {("s", "m0")}
    if tok in ("exec", "exec_lo", "exec_hi"): return {("s", "exec")}
    return set()
class I:
    pass
def parse(line):
    s = line.split(";")[0].strip()
    if not s or s.endswith(":") or s.startswith("."): return None
    parts = s.split(None, 1)
    x = I(); x.op = parts[0]; x.text = line
    rest = parts[1] if len(parts) > 1 else ""
    ops = [o.strip() for o in rest.split(",")] if rest else []
    mods = ""
    if ops:
        last = ops[-1].split(None, 1)
        rest2 = re.sub(r"\b(op_sel|op_sel_hi|neg_lo|neg_hi|quad_perm):\[[^\]]*\]", "", rest)
        ops = [o.strip() for o in rest2.split(",")]
        last = ops[-1].split(None, 1)
        ops[-1] = last[0] if last else ""
        mods = rest
    x.mods = mods
    op = x.op
    x.w = set(); x.r = set(); x.kind = "other"; x.ab = set(); x.c = set(); x.data = set(); x.states = 1
    R = [regs(o) for o in ops]
    if op == "s_nop":
        x.states = int(ops[0], 0) + 1; x.kind = "nop"
    elif op.startswith("v_mfma"):
        x.kind = "mfma"; x.w = R[0]; x.ab = R[1] | R[2]; x.c = R[3]; x.r = x.ab | x.c
        x.passes = 4 if "16x16x32" in op or "16x16x16" in op else 8
    elif op.startswith("v_"):
        x.kind = "valu"
        if "permlane" in op and "swap" in op:
            x.w = R[0] | R[1]; x.r = R[0] | R[1]
        elif op.startswith("v_add_co") or op.startswith("v_addc_co") or op.startswith("v_sub_co"):
            x.w = R[0] | R[1]; x.r = set().union(*R[2:])
        else:
            x.w = R[0]; x.r = set().union(*R[1:]) if len(R) > 1 else set()
            if op.startswith("v_fmac") or op.startswith("v_dot2c") or op.startswith("v_writelane") or "_dpp" in op: x.r |= R[0]
        if op.startswith("v_cndmask") and len(R) == 3: x.r |= {("s", "vcc")}
        x.trans = any(op.startswith(t) for t in TRANS)
    elif op.startswith("ds_"):
        x.kind = "ds"
        if op.startswith("ds_read") or op.startswith("ds_bpermute") or op.startswith("ds_swizzle"):
            x.w = R[0]; x.r = set().union(*R[1:])
        else:
            x.r = set().union(*R)
    elif op.startswith("buffer_") or op.startswith("global_"):
        x.kind = "vmem"
        if re.search(r"\blds\b", mods) or "load_lds" in op:
            x.r = set().union(*R) | {("s", "m0")}; x.dma = True
        elif "load" in op:
            x.w = R[0]; x.r = set().union(*R[1:])
        else:
            x.r = set().union(*R) if R else set()
            if op.startswith("buffer_store") and ("x3" in op or "x4" in op): x.data = R[0]
            if op.startswith("global_store") and ("x3" in op or "x4" in op): x.data = R[1]
            if "atomic" in op and re.search(r"\bsc0\b", mods): x.w = R[0]
    elif op.startswith("s_"):
        x.kind = "salu"
        if op.startswith("s_cmp") or op.startswith("s_cbranch") or op.startswith("s_waitcnt") or op.startswith("s_bitcmp") or op in ("s_barrier", "s_branch", "s_endpgm", "s_sleep", "s_setprio"):
            x.r = set().union(*R) if R else set()
        else:
            x.w = R[0] if R else set(); x.r = set().union(*R[1:]) if len(R) > 1 else set()
            if "saveexec" in op: x.w |= {("s", "exec")}
    return x
def need(p, c):
    n = 0
    vw = {q for q in p.w if q[0] in "va"}; sw = {q for q in p.w if q[0] == "s"}
    if p.kind == "valu":
        if c.kind == "mfma" and vw & c.r: n = max(n, 2)
        if c.kind == "valu":
            if p.trans and not c.trans and vw & c.r: n = max(n, 1)
            if ("permlane" in c.op or "_dpp" in c.op) and vw & c.r: n = max(n, 2)
            if ("readlane" in c.op or "readfirstlane" in c.op) and vw & c.r: n = max(n, 1)
            if sw & c.r: n = max(n, 4 if ("readlane" in c.op or "writelane" in c.op) else 2)
            if ("s", "exec") in sw: n = max(n, 5 if "_dpp" in c.op else 4)
        if c.kind == "vmem" and sw & c.r: n = max(n, 5)
        if c.kind == "mfma" and ("s", "exec") in sw: n = max(n, 4)
    if p.kind == "mfma":
        big = p.passes == 8
        if c.kind == "mfma":
            if vw & c.ab: n = max(n, 12 if big else 8)
            if vw & c.c and not (vw == c.c and p.passes == c.passes): n = max(n, 10 if big else 6)
            if vw & c.w and not (vw & c.c): n = max(n, 12 if big else 8)
        elif c.kind in ("valu", "ds", "vmem"):
            if vw & (c.r | c.w): n = max(n, 12 if big else 8)
            if c.kind == "valu" and p.c & c.w: n = max(n, 7 if big else 3)
    if p.kind == "salu" and ("s", "m0") in sw and c.kind == "vmem" and getattr(c, "dma", False): n = max(n, 1)
    if p.kind == "vmem" and p.data & c.w: n = max(n, 2 if c.kind == "valu" else 1)
    return n
def fix(text, verbose=False):
    out = []; hist = []; added = 0
    for line in text.split("\n"):
        x = parse(line)
        if x is None:
            out.append(line); continue
        dist = 0; short = 0
        for p in reversed(hist):
            if dist >= 20: break
            nd = need(p, x)
            if nd - dist > short: short = nd - dist
            dist += p.states
        if short > 0:
            nl = f"    s_nop {short - 1}"
            out.append(nl); hist.append(parse(nl)); added += short
            if verbose: print("nop", short, "before", line.strip())
        out.append(line); hist.append(x)
        if len(hist) > 64: hist = hist[-32:]
    return "\n".join(out), added
def check_loop(text, label):
    lines = text.split("\n")
    a = next(i for i, l in enumerate(lines) if l.strip() == label + ":")
    b = max(i for i, l in enumerate(lines) if re.search(r"s_c?branch\w*\s+" + re.escape(label) + r"\s*$", l.strip()))
    body = lines[a:b + 1]
    _, added = fix("\n".join(body + body), verbose=True)
    assert added == 0, f"loop {label}: back-edge hazard"
```

```python
from asmlib import *
from layout import *
from k2 import srd

def wave_allreduce_add(A, x, t):
    for sh in (8, 4, 2, 1):
        A("s_nop 1")
        A(f"v_add_f32_dpp v{x}, v{x}, v{x} row_ror:{sh} row_mask:0xf bank_mask:0xf")
    A(f"v_mov_b32 v{t}, v{x}\ns_nop 1\nv_permlane16_swap_b32 v{t}, v{x}\ns_nop 1\nv_add_f32 v{x}, v{x}, v{t}")
    A(f"v_mov_b32 v{t}, v{x}\ns_nop 1\nv_permlane32_swap_b32 v{t}, v{x}\ns_nop 1\nv_add_f32 v{x}, v{x}, v{t}")

def round_bf16(A, x):
    A(f"v_cvt_pk_bf16_f32 v{x}, v{x}, v{x}\nv_and_b32 v{x}, 0xffff0000, v{x}")

def gen_k0(name, timing=False, tslot=0):
    A = Asm()
    A(f"s_cmp_ge_u32 s2, 256\ns_cbranch_scc1 L_end_{name}")
    if timing:
        A("s_memrealtime s[60:61]\ns_memtime s[62:63]")
    A(f"s_load_dwordx2 s[40:41], s[0:1], {ARG_X}\ns_load_dwordx2 s[48:49], s[0:1], {ARG_WS}")
    A("v_lshrrev_b32 v1, 6, v0\nv_and_b32 v2, 63, v0")
    A("s_lshl_b32 s3, s2, 14")
    A("v_lshlrev_b32 v3, 11, v1\nv_lshl_add_u32 v3, v2, 4, v3")
    A("s_waitcnt lgkmcnt(0)")
    srd(A, 4, 40, 41, 2048 * 2048)
    A("buffer_load_dwordx4 v[8:11], v3, s[4:7], s3 offen\nbuffer_load_dwordx4 v[12:15], v3, s[4:7], s3 offen offset:1024")
    srd(A, 8, 48, 49, XN_BYTES, WS_XN)
    srd(A, 12, 48, 49, FLAG_BYTES, WS_FLAG)
    A("s_lshl_b32 s16, s2, 7\nv_lshlrev_b32 v4, 2, v0\nv_cmp_gt_u32 vcc, 32, v0\nv_mov_b32 v5, 0x7fffffff\nv_mov_b32 v6, 0")
    A("v_cndmask_b32 v4, v5, v4, vcc\nbuffer_store_dword v6, v4, s[12:15], s16 offen")
    A("v_and_b32 v4, 7, v2\nv_xor_b32 v4, v4, v1\nv_lshlrev_b32 v4, 4, v4\nv_lshl_add_u32 v4, v2, 7, v4")
    A("v_lshrrev_b32 v5, 3, v0\nv_xor_b32 v6, v0, v5\nv_and_b32 v6, 7, v6")
    A("v_lshrrev_b32 v7, 2, v5\nv_lshlrev_b32 v7, 17, v7")
    A("v_and_b32 v5, 3, v5\nv_lshl_add_u32 v5, v5, 4, v6\nv_lshl_add_u32 v5, v5, 4, v7")
    A("s_lshr_b32 s17, s2, 1\ns_lshl_b32 s17, s17, 10\ns_and_b32 s18, s2, 1\ns_lshl_b32 s18, s18, 7\ns_add_u32 s17, s17, s18")
    A(f"s_add_u32 s18, s17, {16 * 131072}")
    A("v_lshlrev_b32 v6, 4, v0")
    A("s_waitcnt vmcnt(1)")
    for q in range(8):
        A(f"v_lshlrev_b32 v{16 + 2 * q}, 16, v{8 + q}\nv_and_b32 v{17 + 2 * q}, 0xffff0000, v{8 + q}")
    A("v_pk_add_f32 v[32:33], v[16:17], v[18:19]\nv_pk_add_f32 v[34:35], v[20:21], v[22:23]")
    A("v_pk_add_f32 v[36:37], v[24:25], v[26:27]\nv_pk_add_f32 v[38:39], v[28:29], v[30:31]")
    A("v_pk_add_f32 v[32:33], v[32:33], v[34:35]\nv_pk_add_f32 v[36:37], v[36:37], v[38:39]")
    A("v_pk_add_f32 v[32:33], v[32:33], v[36:37]\nv_add_f32 v32, v32, v33")
    wave_allreduce_add(A, 32, 33)
    A("v_mul_f32 v32, 0x3a800000, v32")
    A("v_mov_b32 v34, 0\nv_mov_b32 v35, 0")
    for q in range(16):
        A(f"v_sub_f32 v36, v{16 + q}, v32\nv_fmac_f32 v{34 + (q & 1)}, v36, v36")
    A("v_add_f32 v34, v34, v35")
    wave_allreduce_add(A, 34, 33)
    A("v_mul_f32 v34, 0x3a800000, v34")
    round_bf16(A, 34)
    A("v_add_f32 v34, 0x3727c5ac, v34")
    round_bf16(A, 34)
    A("v_sqrt_f32 v34, v34\ns_nop 0")
    round_bf16(A, 34)
    A("v_rcp_f32 v34, v34")
    round_bf16(A, 32)
    for q in range(8):
        A(f"v_sub_f32 v36, v{16 + 2 * q}, v32\nv_sub_f32 v37, v{17 + 2 * q}, v32\nv_cvt_pk_bf16_f32 v38, v36, v37")
        A(f"v_lshlrev_b32 v36, 16, v38\nv_and_b32 v37, 0xffff0000, v38\nv_mul_f32 v36, v36, v34\nv_mul_f32 v37, v37, v34")
        A(f"v_cvt_pk_bf16_f32 v{8 + q}, v36, v37")
    A("ds_write_b128 v4, v[8:11]\nds_write_b128 v4, v[12:15] offset:8192")
    A("s_waitcnt lgkmcnt(0)\ns_barrier")
    A("ds_read_b128 v[8:11], v6\nds_read_b128 v[12:15], v6 offset:8192")
    A("s_waitcnt lgkmcnt(1)\nbuffer_store_dwordx4 v[8:11], v5, s[8:11], s17 offen")
    A("s_waitcnt lgkmcnt(0)\nbuffer_store_dwordx4 v[12:15], v5, s[8:11], s18 offen")
    if timing:
        A("s_waitcnt vmcnt(0)\ns_memrealtime s[68:69]\ns_memtime s[70:71]\ns_waitcnt lgkmcnt(0)")
        srd(A, 4, 48, 49, 1 << 20, WS_TIME + tslot * 65536)
        A("s_lshl_b32 s35, s2, 7\nv_and_b32 v1, 3, v1\nv_lshl_add_u32 v1, v1, 5, s35")
        for q, sr in enumerate((60, 62, 68, 70, 68, 70)):
            A(f"v_mov_b32 v{32 + q}, s{sr}")
        A(f"v_mov_b32 v38, 0\nv_mov_b32 v39, 0")
        A(f"buffer_store_dwordx4 v[32:35], v1, s[4:7], 0 offen\nbuffer_store_dwordx4 v[36:39], v1, s[4:7], 0 offen offset:16")
    A.label(f"L_end_{name}")
    A("s_endpgm")
    return A.text(), 16384
```

```python
from asmlib import *
from layout import *
from k2 import srd
import struct
def f2u(x): return struct.unpack("<I", struct.pack("<f", x))[0]

STAGE = 40960; G_OFF = 12288; U_OFF = 26624
KV_K = 40960; KV_V = KV_K + 32768; ONES = KV_V + 32768
LDS_BYTES = 3 * STAGE

def gen_k1(name, timing=False, tslot=1, st_act="", mainonly=False, loads=True):
    A = Asm()
    NSTEP = 16
    vQ = [2, 3, 4]; vG = [5, 6, 7, 8, 9, 10, 11]; vA = 12; vTq = [13, 14]; vTg = 15
    def acc(j, i):
        n = j * 4 + i
        return 20 + 4 * n if n < 59 else 256 + 96 + 4 * (n - 59)
    def abuf(p, kk, i): return 256 + 32 * p + 16 * kk + 4 * i
    def bbuf(j, kk): return 256 + 64 + 8 * (j % 4) + 4 * kk
    S_XN, S_QKV, S_GU, S_ACT, S_KV, S_FL = 4, 8, 12, 16, 20, 24
    sW, sH, sM = 28, 29, 30
    sA, sQ, sG = 31, 32, 33
    sLq, sLg, sSt, sRd, sCnt = 34, 35, 36, 37, 38
    sRs = 39
    A(f"s_cmp_ge_u32 s2, 256\ns_cbranch_scc1 L_end_{name}")
    if timing: A("s_memrealtime s[60:61]\ns_memtime s[62:63]")
    A(f"s_load_dwordx2 s[40:41], s[0:1], {ARG_WQKV}\ns_load_dwordx4 s[44:47], s[0:1], {ARG_W1}\ns_load_dwordx2 s[48:49], s[0:1], {ARG_WS}")
    A(f"v_lshrrev_b32 v1, 6, v0\nv_and_b32 v0, 63, v0\nv_readfirstlane_b32 s{sW}, v1")
    A(f"s_and_b32 s50, s2, 7\ns_lshr_b32 s51, s2, 3\ns_and_b32 s52, s51, 3\ns_lshl_b32 s50, s50, 2\ns_add_u32 s{sH}, s50, s52\ns_lshr_b32 s{sM}, s51, 2")
    A(f"v_lshlrev_b32 v{vA}, 4, v0")
    def swap23(dst, src, t):
        A(f"v_and_b32 v{t}, 4, v{src}\nv_lshlrev_b32 v{t}, 1, v{t}\nv_and_b32 v{dst}, 8, v{src}\nv_lshrrev_b32 v{dst}, 1, v{dst}\nv_or_b32 v{t}, v{t}, v{dst}")
        A(f"v_and_b32 v{dst}, 0xfffffff3, v{src}\nv_or_b32 v{dst}, v{dst}, v{t}")
    A(f"s_lshl_b32 s50, s{sH}, 6\ns_mul_i32 s51, s{sW}, {16 * 6144}\ns_add_u32 s50, s50, s51")
    for i in range(3):
        A(f"v_add_u32 v16, {64 * i}, v0\nv_mul_u32_u24 v17, 5462, v16\nv_lshrrev_b32 v17, 16, v17")
        A("v_mul_u32_u24 v18, 12, v17\nv_sub_u32 v16, v16, v18")
        A("v_lshrrev_b32 v18, 1, v17\nv_and_b32 v18, 2, v18\nv_xor_b32 v16, v16, v18")
        A("v_lshrrev_b32 v18, 2, v16\nv_lshlrev_b32 v18, 11, v18\nv_and_b32 v16, 3, v16\nv_lshl_add_u32 v16, v16, 4, v18")
        swap23(18, 17, 19)
        A(f"v_mul_u32_u24 v18, 6144, v18\nv_add3_u32 v16, v16, v18, s50\nv_subrev_u32 v{vQ[i]}, {1024 * i}, v16")
    A(f"s_mul_i32 s50, s{sH}, 224\ns_and_b32 s51, s{sW}, 1\ns_mul_i32 s51, s51, {32 * 7168}\ns_add_u32 s50, s50, s51")
    A(f"s_and_b32 s52, s{sH}, 1\ns_lshl_b32 s52, s52, 1")
    for i in range(7):
        A(f"v_add_u32 v16, {64 * i}, v0\nv_mul_u32_u24 v17, 4682, v16\nv_lshrrev_b32 v17, 16, v17")
        A("v_mul_u32_u24 v18, 14, v17\nv_sub_u32 v16, v16, v18\nv_add_u32 v16, s52, v16")
        A("v_subrev_u32 v18, 14, v16\nv_min_u32 v16, v16, v18\nv_lshlrev_b32 v16, 4, v16")
        swap23(18, 17, 19)
        A(f"v_mul_u32_u24 v18, 7168, v18\nv_add3_u32 v16, v16, v18, s50\nv_subrev_u32 v{vG[i]}, {1024 * (i & 3)}, v16")
    A("v_lshrrev_b32 v16, 2, v0\nv_and_b32 v17, 7, v16\nv_and_b32 v16, 8, v16\nv_lshl_add_u32 v16, v16, 1, v17")
    A("v_and_b32 v17, 3, v0\nv_lshlrev_b32 v17, 3, v17")
    A(f"v_mul_u32_u24 v18, 224, v16\nv_add_u32 v{vTg}, v18, v17")
    A("v_mul_u32_u24 v18, 192, v16\nv_add_u32 v18, v18, v17\nv_and_b32 v17, 16, v0\nv_lshlrev_b32 v17, 1, v17")
    A(f"v_add_u32 v{vTq[0]}, v18, v17\nv_xor_b32 v17, 32, v17\nv_add_u32 v{vTq[1]}, v18, v17")
    A("s_waitcnt lgkmcnt(0)")
    srd(A, S_XN, 48, 49, XN_BYTES, WS_XN)
    srd(A, S_QKV, 40, 41, 1024 * 6144)
    A(f"s_cmp_lt_u32 s{sW}, 2\ns_cselect_b32 s50, s44, s46\ns_cselect_b32 s51, s45, s47")
    srd(A, S_GU, 50, 51, 1024 * 7168)
    A(f"s_lshl_b32 s{sA}, s{sM}, 14\ns_lshl_b32 s50, s{sW}, 12\ns_add_u32 s{sA}, s{sA}, s50")
    A(f"s_mov_b32 s{sQ}, 0\ns_mov_b32 s{sG}, 0\ns_mov_b32 s{sSt}, 0")
    A(f"s_mul_i32 s{sLq}, s{sW}, 3072\ns_mul_i32 s{sLg}, s{sW}, 7168\ns_add_u32 s{sLg}, s{sLg}, {G_OFF}")

    def a_loads(p):
        out = []
        for kk in range(2):
            for i in range(4):
                ins = f"buffer_load_dwordx4 {r(abuf(p, kk, i), 4)}, v{vA}, s[{S_XN}:{S_XN+3}], s{sA} offen offset:{1024 * i}"
                if i == 3: ins += f"\ns_add_u32 s{sA}, s{sA}, 131072"
                out.append(ins)
        return out if loads else []
    def dma():
        out = []
        for i in range(3):
            ins = f"buffer_load_dwordx4 v{vQ[i]}, s[{S_QKV}:{S_QKV+3}], s{sQ} offen offset:{1024 * i} lds"
            if i == 0: ins = f"s_add_u32 m0, s{sLq}, s{sSt}\n" + ins
            if i == 2: ins += f"\ns_add_u32 s{sQ}, s{sQ}, {64 * 6144}\ns_add_u32 m0, s{sLg}, s{sSt}"
            out.append(ins)
        for i in range(7):
            ins = f"buffer_load_dwordx4 v{vG[i]}, s[{S_GU}:{S_GU+3}], s{sG} offen offset:{1024 * (i & 3)} lds"
            if i == 3: ins += f"\ns_add_u32 m0, m0, 4096"
            if i == 6: ins += (f"\ns_add_u32 s{sG}, s{sG}, {64 * 7168}\ns_add_u32 s{sSt}, s{sSt}, {STAGE}\n"
                               f"s_cmp_eq_u32 s{sSt}, {3 * STAGE}\ns_cselect_b32 s{sSt}, 0, s{sSt}")
            out.append(ins)
        return out if loads else []
    def treads(j):
        out = []
        for kk in range(2):
            for t in range(2):
                d = r(bbuf(j, kk) + 2 * t, 2)
                if j < 6:
                    out.append(f"ds_read_b64_tr_b16 {d}, v{vTq[j & 1]} offset:{(8 * t + 32 * kk) * 192 + 32 * (j & ~1)}")
                else:
                    base = G_OFF + 32 * (j - 6) if j < 13 else U_OFF + 32 * (j - 13)
                    out.append(f"ds_read_b64_tr_b16 {d}, v{vTg} offset:{base + (8 * t + 32 * kk) * 224}")
        return out
    def mfmas(j, p):
        out = []
        order = range(4) if j % 2 == 0 else reversed(range(4))
        for n, i in enumerate(order):
            for kk in ((0, 1) if n % 2 == 0 else (1, 0)):
                c = r(acc(j, i), 4); w = r(bbuf(j, kk), 4); x = r(abuf(p, kk, i), 4)
                if j in (4, 5): out.append(f"v_mfma_f32_16x16x32_bf16 {c}, {x}, {w}, {c}")
                else: out.append(f"v_mfma_f32_16x16x32_bf16 {c}, {w}, {x}, {c}")
        return out
    for x in dma(): A(x)
    for x in a_loads(0): A(x)
    for x in dma(): A(x)
    srd(A, S_ACT, 48, 49, ACT_BYTES, WS_ACT)
    srd(A, S_KV, 48, 49, KV_BYTES, WS_KV)
    srd(A, S_FL, 48, 49, FLAG_BYTES, WS_FLAG)
    for n in range(80):
        b = acc(n // 4, n % 4)
        for q in range(4):
            A(f"v_mov_b32 v{b + q}, 0" if b < 256 else f"v_accvgpr_write_b32 a{b + q - 256}, 0")
    A(f"s_mov_b32 s{sRs}, 0\ns_mov_b32 s42, {(-2 * STAGE) & 0xffffffff}\ns_mov_b32 s43, {STAGE}")
    nvm = 18 if loads else 0
    A(f"s_waitcnt vmcnt({10 if loads else 0})\ns_barrier")
    for j in range(3):
        for x in treads(j): A(x)

    def step(p, do_a, do_dma, last, vm_start, vm_beta):
        vm = (a_loads(1 - p) if do_a else []) + (dma() if do_dma else [])
        slots = [[] for _ in range(20)]
        for n, x in enumerate(vm):
            slots[min(n * 17 // max(len(vm), 17), 16)].append(x)
        for j in range(20):
            if j == 0 and vm_start is not None:
                A(f"s_waitcnt vmcnt({vm_start}) lgkmcnt(8)")
            elif j == 17:
                if not last:
                    A(f"s_waitcnt vmcnt({vm_beta}) lgkmcnt(0)\ns_barrier")
                else:
                    A("s_waitcnt lgkmcnt(0)")
            elif j < 17 or not last:
                if j not in (18, 19): A("s_waitcnt lgkmcnt(8)")
            fill = []
            if j == 16 and not last:
                rot = (f"s_add_u32 s{sRs}, s{sRs}, 1\ns_cmp_eq_u32 s{sRs}, 3\ns_cselect_b32 s{sRd}, s42, s43\n"
                       f"s_cselect_b32 s{sRs}, 0, s{sRs}")
            if j + 3 < 20: fill += treads(j + 3)
            elif not last: fill += treads(j + 3 - 20)
            fill += slots[j]
            if j == 16 and not last:
                fill.append(rot)
                fill.append(f"v_add_u32 v{vTq[0]}, s{sRd}, v{vTq[0]}\nv_add_u32 v{vTq[1]}, s{sRd}, v{vTq[1]}")
                fill.append(f"v_add_u32 v{vTg}, s{sRd}, v{vTg}")
            ms = mfmas(j, p)
            k = 0
            for n, m in enumerate(ms):
                A(m)
                want = min(len(fill), (len(fill) * (n + 1) + 6) // 7)
                while k < want:
                    A(fill[k]); k += 1
    L = 10 if loads else 0
    A(f"s_mov_b32 s{sCnt}, 7")
    A.label(f"L_loop_{name}")
    step(0, True, True, False, L, 18 if loads else 0)
    step(1, True, True, False, L, 18 if loads else 0)
    A(f"s_sub_u32 s{sCnt}, s{sCnt}, 1\ns_cmp_lg_u32 s{sCnt}, 0\ns_cbranch_scc1 L_loop_{name}")
    step(0, True, False, False, L, 8 if loads else 0)
    step(1, False, False, True, 0, None)
    if timing: A("s_memrealtime s[64:65]\ns_memtime s[66:67]")

    if not mainonly:
        epilogue(A, name, acc, S_ACT, S_KV, S_FL, sW, sH, sM, vA, st_act, timing)
    if timing:
        A("s_waitcnt vmcnt(0)\ns_memrealtime s[68:69]\ns_memtime s[70:71]\ns_waitcnt lgkmcnt(0)")
        srd(A, S_XN, 48, 49, 1 << 20, WS_TIME + tslot * 65536)
        A(f"s_lshl_b32 s35, s2, 2\ns_add_u32 s35, s35, s{sW}\ns_lshl_b32 s35, s35, 5")
        for q, sr in enumerate((60, 62, 64, 66, 68, 70, 72, 74)):
            A(f"v_mov_b32 v{32 + q}, s{sr}")
        A(f"v_mov_b32 v1, s35")
        A(f"buffer_store_dwordx4 v[32:35], v1, s[{S_XN}:{S_XN+3}], 0 offen\nbuffer_store_dwordx4 v[36:39], v1, s[{S_XN}:{S_XN+3}], 0 offen offset:16")
    A.label(f"L_end_{name}")
    A("s_endpgm")
    return A.text(), LDS_BYTES

def epilogue(A, name, acc, S_ACT, S_KV, S_FL, sW, sH, sM, vA, st_act, timing):
    def pack2(dst, a, b):
        A(f"v_cvt_pk_bf16_f32 v{dst}, v{a}, v{a+1}\nv_cvt_pk_bf16_f32 v{dst+1}, v{a+2}, v{a+3}")
        A(f"v_cvt_pk_bf16_f32 v{dst+2}, v{b}, v{b+1}\nv_cvt_pk_bf16_f32 v{dst+3}, v{b+2}, v{b+3}")
    A(f"s_lshl_b32 s50, s{sM}, 5\ns_add_u32 s50, s50, s{sH}")
    A(f"s_lshl_b32 s51, s50, 15\ns_lshl_b32 s52, s{sW}, 13\ns_add_u32 s51, s51, s52")
    A(f"s_add_u32 s53, s51, 4096")
    A(f"s_lshl_b32 s54, s{sW}, 12\nv_add_u32 v1, s54, v{vA}")
    A(f"v_add_u32 v2, {KV_K + 16384}, v1\nv_add_u32 v3, {KV_V + 16384}, v1")
    for i in range(4):
        pack2(acc(2, i), acc(2, i), acc(3, i))
        A(f"buffer_store_dwordx4 {v(acc(2, i), 4)}, v{vA}, s[{S_KV}:{S_KV+3}], s51 offen offset:{1024 * i} sc1")
        A(f"ds_write_b128 v2, {v(acc(2, i), 4)} offset:{1024 * i}")
    for b in range(2):
        for dt in range(2):
            d = acc(4 + dt, 2 * b)
            pack2(d, d, acc(4 + dt, 2 * b + 1))
            A(f"buffer_store_dwordx4 {v(d, 4)}, v{vA}, s[{S_KV}:{S_KV+3}], s53 offen offset:{2048 * b + 1024 * dt} sc1")
            A(f"ds_write_b128 v3, {v(d, 4)} offset:{2048 * b + 1024 * dt}")
    for i in range(4):
        pack2(acc(0, i), acc(0, i), acc(1, i))
    A(f"s_cmp_eq_u32 s{sM}, 0\ns_cselect_b32 s55, 32, 0\nv_mov_b32 v4, 0x3f803f80\nv_cmp_le_u32 vcc, s55, v0")
    A(f"v_lshlrev_b32 v5, 2, v0\nv_add_u32 v5, {ONES}, v5\nv_cndmask_b32 v4, 0, v4, vcc\nds_write_b32 v5, v4")
    A(f"s_mov_b32 s56, {f2u(-1.4426950408889634)}\ns_mov_b32 s57, s56\ns_mov_b32 s58, 1.0\ns_mov_b32 s59, 1.0")
    A(f"s_lshr_b32 s76, s{sH}, 1\ns_mul_i32 s76, s76, 7\ns_add_u32 s76, s76, 32\ns_and_b32 s77, s{sH}, 1")
    A(f"s_lshl_b32 s78, s{sM}, 14\ns_add_u32 s78, s78, s54")
    A("s_add_u32 s79, s76, 3\ns_lshl_b32 s79, s79, 17\ns_add_u32 s79, s79, s78\ns_lshl_b32 s80, s77, 3\ns_add_u32 s79, s79, s80")
    A("s_lshl_b32 s80, s77, 2\ns_add_u32 s76, s76, s80\ns_lshl_b32 s76, s76, 17\ns_add_u32 s76, s76, s78")
    A(f"s_lshl_b32 s80, s{sH}, 17\ns_add_u32 s78, s78, s80")
    T = 36
    def silu_tile(jj, i, dst, tb):
        g = acc(6 + jj, i); u = acc(13 + jj, i)
        if u >= 256:
            for q in range(4): A(f"v_accvgpr_read_b32 v{tb + 4 + q}, a{u - 256 + q}")
            u = tb + 4
        A(f"v_pk_mul_f32 {v(tb, 2)}, {v(g, 2)}, s[56:57]\nv_pk_mul_f32 {v(tb + 2, 2)}, {v(g + 2, 2)}, s[56:57]")
        for q in range(4): A(f"v_exp_f32 v{tb + q}, v{tb + q}")
        A(f"v_pk_mul_f32 {v(tb + 4, 2)}, {v(g, 2)}, {v(u, 2)}\nv_pk_mul_f32 {v(tb + 6, 2)}, {v(g + 2, 2)}, {v(u + 2, 2)}")
        A(f"v_pk_add_f32 {v(tb, 2)}, {v(tb, 2)}, s[58:59]\nv_pk_add_f32 {v(tb + 2, 2)}, {v(tb + 2, 2)}, s[58:59]")
        for q in range(4): A(f"v_rcp_f32 v{tb + q}, v{tb + q}")
        A(f"v_pk_mul_f32 {v(tb + 4, 2)}, {v(tb + 4, 2)}, {v(tb, 2)}\nv_pk_mul_f32 {v(tb + 6, 2)}, {v(tb + 6, 2)}, {v(tb + 2, 2)}")
        A(f"v_cvt_pk_bf16_f32 v{dst}, v{tb + 4}, v{tb + 5}\nv_cvt_pk_bf16_f32 v{dst + 1}, v{tb + 6}, v{tb + 7}")
    nst = 0
    for p in range(3):
        for i in range(4):
            d = acc(6 + 2 * p, i)
            silu_tile(2 * p, i, d, T)
            silu_tile(2 * p + 1, i, d + 2, T + 8)
            A(f"buffer_store_dwordx4 {v(d, 4)}, v{vA}, s[{S_ACT}:{S_ACT+3}], s76 offen offset:{1024 * i}{st_act}")
            nst += 1
        A("s_add_u32 s76, s76, 131072")
        if p == 0:
            A(f"s_waitcnt vmcnt({nst})")
            A(f"s_lshl_b32 s81, s50, 7\ns_lshl_b32 s82, s{sW}, 2\ns_add_u32 s81, s81, s82\nv_mov_b32 v5, 0\nv_mov_b32 v6, 1")
            A(f"s_mov_b64 exec, 1\nbuffer_store_dword v6, v5, s[{S_FL}:{S_FL+3}], s81 offen sc1\ns_mov_b64 exec, -1")
    for i in range(4):
        d = acc(12, i)
        silu_tile(6, i, d, T + 8 * (i & 1))
        A(f"buffer_store_dwordx2 {v(d, 2)}, v{vA}, s[{S_ACT}:{S_ACT+3}], s79 offen offset:{1024 * i}{st_act}")
    if timing: A("s_memrealtime s[72:73]")
    A("s_waitcnt lgkmcnt(0)\ns_barrier")
    A(f"s_cmp_eq_u32 s{sM}, 0\ns_cbranch_scc1 L_first_{name}")
    A(f"s_sub_u32 s81, s81, {32 * 128}\ns_sub_u32 s51, s51, {32 * 32768}\ns_sub_u32 s53, s53, {32 * 32768}\nv_mov_b32 v5, 0")
    A.label(f"L_poll_{name}")
    A(f"buffer_load_dword v6, v5, s[{S_FL}:{S_FL+3}], s81 offen sc1\ns_waitcnt vmcnt(0)\nv_readfirstlane_b32 s82, v6")
    A(f"s_cmp_eq_u32 s82, 1\ns_cbranch_scc0 L_poll_{name}")
    A(f"s_add_u32 m0, s54, {KV_K}")
    for i in range(4):
        A(f"buffer_load_dwordx4 v{vA}, s[{S_KV}:{S_KV+3}], s51 offen offset:{1024 * i} sc1 lds")
    A(f"s_add_u32 m0, s54, {KV_V}")
    for i in range(4):
        A(f"buffer_load_dwordx4 v{vA}, s[{S_KV}:{S_KV+3}], s53 offen offset:{1024 * i} sc1 lds")
    A(f"s_branch L_join_{name}")
    A.label(f"L_first_{name}")
    A(f"v_and_b32 v5, 48, v0\nv_lshlrev_b32 v5, 4, v5\nv_add_u32 v5, {KV_K + 16384}, v5\nds_read_b128 v[36:39], v5")
    A(f"v_mov_b32 v40, 0\nv_mov_b32 v41, 0\nv_mov_b32 v42, 0\nv_mov_b32 v43, 0")
    A(f"v_add_u32 v2, {KV_K}, v1\nv_add_u32 v3, {KV_V}, v1\ns_waitcnt lgkmcnt(0)")
    for i in range(4):
        A(f"ds_write_b128 v2, v[36:39] offset:{1024 * i}\nds_write_b128 v3, v[40:43] offset:{1024 * i}")
    A.label(f"L_join_{name}")
    MF, ML = 220, 224
    A(f"v_lshrrev_b32 v5, 4, v0\nv_lshlrev_b32 v5, 2, v5\nv_and_b32 v6, 15, v0\nv_mov_b32 v7, {f2u(-1e30)}")
    for q in range(4):
        A(f"v_add_u32 v8, {q}, v5\nv_cmp_gt_u32 vcc, v8, v6\nv_cndmask_b32 v{MF + q}, v7, 0, vcc\nv_cndmask_b32 v{ML + q}, 0, v7, vcc")
    A(f"v_add_u32 v2, {KV_K}, v1\nv_add_u32 v3, {KV_V}, v1")
    A(f"s_lshl_b32 s82, s{sW}, 5\ns_add_u32 s82, s82, {ONES}\nv_mov_b32 v4, s82")
    A(f"s_mov_b32 s56, {f2u(0.17677669529663687 * 1.4426950408889634)}\ns_mov_b32 s57, s56")
    A("s_waitcnt vmcnt(0) lgkmcnt(0)\ns_barrier")
    if timing: A("s_memrealtime s[74:75]")
    KF = lambda n: 256 + 4 * n
    VF = lambda B, dt: 256 + 80 + 8 * B + 4 * dt
    OF = lambda B: 256 + 160 + 4 * B
    for n in range(20): A(f"ds_read_b128 {r(KF(n), 4)}, v2 offset:{1024 * n}")
    for B in range(10):
        for dt in range(2): A(f"ds_read_b128 {r(VF(B, dt), 4)}, v3 offset:{2048 * B + 1024 * dt}")
        A(f"ds_read_b128 {r(OF(B), 4)}, v4 offset:{16 * B}")
    S = lambda qi, n: 52 + 72 * qi + 4 * n
    O = lambda qi, t: 196 + 12 * qi + 4 * t
    A("s_waitcnt lgkmcnt(0)")
    for b in range(2):
        for n in range(18):
            for qi in range(2):
                if n == 17 - 17 * qi: continue
                first = (n == qi); lastt = (n == 16 + qi)
                c = v(MF, 4) if first else v(ML, 4) if lastt else "0"
                A(f"v_mfma_f32_16x16x32_bf16 {v(S(qi, n), 4)}, {r(KF(2 * b + n), 4)}, {v(acc(0, 2 * b + qi), 4)}, {c}")
        for qi in range(2):
            rs = [S(qi, n) + q for n in range(qi, 17 + qi) for q in range(4)]
            m0_, m1_ = 228 + 4 * qi, 229 + 4 * qi
            A(f"v_max3_f32 v{m0_}, v{rs[0]}, v{rs[1]}, v{rs[2]}\nv_max3_f32 v{m1_}, v{rs[3]}, v{rs[4]}, v{rs[5]}")
            k = 6; t = 0
            while k + 1 < len(rs):
                mm = (m0_, m1_)[t]; t ^= 1
                A(f"v_max3_f32 v{mm}, v{mm}, v{rs[k]}, v{rs[k + 1]}"); k += 2
            assert k == len(rs)
            A(f"v_max_f32 v{m0_}, v{m0_}, v{m1_}\nv_mov_b32 v{m1_}, v{m0_}\nv_permlane16_swap_b32 v{m1_}, v{m0_}")
            A(f"v_max_f32 v{m0_}, v{m0_}, v{m1_}\nv_mov_b32 v{m1_}, v{m0_}\nv_permlane32_swap_b32 v{m1_}, v{m0_}")
            A(f"v_max_f32 v{m0_}, v{m0_}, v{m1_}\nv_mul_f32 v{m0_}, s56, v{m0_}\nv_sub_f32 v{m0_}, 0, v{m0_}\nv_mov_b32 v{m1_}, v{m0_}")
            for n in range(qi, 17 + qi):
                s_ = S(qi, n)
                A(f"v_pk_fma_f32 {v(s_, 2)}, {v(s_, 2)}, s[56:57], {v(m0_, 2)}\nv_pk_fma_f32 {v(s_ + 2, 2)}, {v(s_ + 2, 2)}, s[56:57], {v(m0_, 2)}")
                for q in range(4): A(f"v_exp_f32 v{s_ + q}, v{s_ + q}")
            for B in range(9):
                s0, s1 = S(qi, 2 * B), S(qi, 2 * B + 1)
                if qi == 1 and B == 0:
                    A(f"v_mov_b32 v{s0}, 0\nv_mov_b32 v{s0 + 1}, 0")
                else:
                    A(f"v_cvt_pk_bf16_f32 v{s0}, v{s0}, v{s0 + 1}\nv_cvt_pk_bf16_f32 v{s0 + 1}, v{s0 + 2}, v{s0 + 3}")
                if qi == 0 and B == 8:
                    A(f"v_mov_b32 v{s0 + 2}, 0\nv_mov_b32 v{s0 + 3}, 0")
                else:
                    A(f"v_cvt_pk_bf16_f32 v{s0 + 2}, v{s1}, v{s1 + 1}\nv_cvt_pk_bf16_f32 v{s0 + 3}, v{s1 + 2}, v{s1 + 3}")
            for B in range(9):
                for t in range(3):
                    src = OF(b + B) if t == 2 else VF(b + B, t)
                    c = "0" if B == 0 else v(O(qi, t), 4)
                    A(f"v_mfma_f32_16x16x32_bf16 {v(O(qi, t), 4)}, {r(src, 4)}, {v(S(qi, 2 * B), 4)}, {c}")
        for qi in range(2):
            A(f"v_rcp_f32 v236, v{O(qi, 2)}\nv_mov_b32 v237, v236")
            for t in range(2):
                o = O(qi, t)
                A(f"v_pk_mul_f32 {v(o, 2)}, {v(o, 2)}, v[236:237]\nv_pk_mul_f32 {v(o + 2, 2)}, {v(o + 2, 2)}, v[236:237]")
            d = 240 + 4 * qi
            pack2(d, O(qi, 0), O(qi, 1))
            A(f"buffer_store_dwordx4 {v(d, 4)}, v{vA}, s[{S_ACT}:{S_ACT+3}], s78 offen offset:{1024 * (2 * b + qi)}{st_act}")
```

```python
from asmlib import *
from layout import *

def srd(A, d, base_lo, base_hi, nbytes, add=0):
    if add:
        A(f"s_add_u32 s{d}, s{base_lo}, {add}\ns_addc_u32 s{d+1}, s{base_hi}, 0")
    else:
        A(f"s_mov_b32 s{d}, s{base_lo}\ns_mov_b32 s{d+1}, s{base_hi}")
    A(f"s_mov_b32 s{d+2}, {nbytes}\ns_mov_b32 s{d+3}, 0x20000")

def gen_k2(name, P=3, mfma=True, timing=False, loads=True, tslot=0, la=True, lw=True, xmap=0):
    A = Asm()
    NST = 36
    RA = P + 1; RL = P + 1
    LDS_EX = 65536 if RL <= 4 else None
    SLOT = 4096
    WRING = RL * SLOT
    reuse = LDS_EX is None
    if reuse: LDS_EX = 0
    ACC = 256
    def acc(i, j): return ACC + (i * 4 + j) * 4
    ring_regs = []
    avail = [256 + 128 + 32 * k for k in range(4)] + [64 + 32 * k for k in range(6)]
    RING = avail[:RA]
    WF = [32, 48]
    vA = [2, 3, 4, 5]; vW = [6, 7, 8, 9]; vT = [10, 11, 12, 13]
    vX = 16
    vO = 14; vtmp = 15
    S_ACT, S_WO, S_W2, S_X, S_OUT = 4, 8, 12, 16, 20
    sW, sA, sWo, sL = 24, 25, 26, 27
    A(f"s_cmp_ge_u32 s2, 256\ns_cbranch_scc1 L_end_{name}")
    if timing:
        A("s_memrealtime s[60:61]\ns_memtime s[62:63]")
    A(f"s_load_dwordx2 s[40:41], s[0:1], {ARG_X}\ns_load_dwordx2 s[42:43], s[0:1], {ARG_WO}")
    A(f"s_load_dwordx4 s[44:47], s[0:1], {ARG_W2}\ns_load_dwordx2 s[48:49], s[0:1], {ARG_WS}")
    A("v_lshrrev_b32 v1, 6, v0\nv_and_b32 v0, 63, v0\ns_nop 0\nv_readfirstlane_b32 s28, v1")
    A("s_and_b32 s29, s2, 7\ns_lshr_b32 s30, s2, 3")
    if xmap == 0:
        A("s_lshr_b32 s31, s29, 1\ns_lshl_b32 s31, s31, 2\ns_and_b32 s32, s30, 3\ns_add_u32 s31, s31, s32")
        A("s_and_b32 s33, s29, 1\ns_lshl_b32 s33, s33, 3\ns_lshr_b32 s34, s30, 2\ns_add_u32 s33, s33, s34")
    elif xmap == 1:
        A("s_lshl_b32 s31, s29, 1\ns_and_b32 s32, s30, 1\ns_add_u32 s31, s31, s32\ns_lshr_b32 s33, s30, 1")
    elif xmap == 2:
        A("s_mov_b32 s31, 0\ns_mov_b32 s33, 0")
    elif xmap == 3:
        A("s_mov_b32 s31, s29\ns_and_b32 s33, s30, 15")
    for p in range(4):
        A(f"s_add_u32 s35, s28, {p}\ns_and_b32 s35, s35, 3\ns_lshl_b32 s35, s35, 11")
        A(f"v_lshl_add_u32 v{vA[p]}, v0, 4, s35")
    A("v_lshrrev_b32 v14, 3, v0")
    A("v_and_b32 v15, 7, v0")
    A("v_and_b32 v1, 6, v14")
    A("v_xor_b32 v15, v15, v1")
    A("v_lshlrev_b32 v15, 4, v15\nv_lshl_add_u32 v15, v14, 11, v15")
    A("s_lshl_b32 s35, s33, 7")
    A(f"v_add_u32 v{vW[0]}, s35, v15")
    for i in range(1, 4):
        A(f"v_add_u32 v{vW[i]}, {i * (8 * 2048 - 1024)}, v{vW[0]}")
    A(f"s_mul_i32 s{sL}, s28, {WRING}")
    A("v_lshrrev_b32 v14, 2, v0")
    A("v_lshrrev_b32 v1, 3, v0\nv_and_b32 v1, 3, v1")
    A("v_and_b32 v15, 3, v0\nv_lshlrev_b32 v15, 3, v15\nv_lshl_add_u32 v15, v14, 7, v15")
    A(f"v_add_u32 v15, s{sL}, v15")
    for j in range(4):
        A(f"v_xor_b32 v14, {j}, v1\nv_lshl_add_u32 v{vT[j]}, v14, 5, v15")
    A("s_waitcnt lgkmcnt(0)")
    srd(A, S_ACT, 48, 49, ACT_BYTES, WS_ACT)
    srd(A, S_WO, 42, 43, 1024 * 2048)
    srd(A, S_W2, 44, 45, 3584 * 2048)
    srd(A, S_X, 40, 41, 2048 * 2048)
    srd(A, S_OUT, 46, 47, 2048 * 2048)
    A(f"s_lshl_b32 s{sA}, s28, 17\ns_lshl_b32 s35, s31, 13\ns_add_u32 s{sA}, s{sA}, s35")
    A(f"s_lshl_b32 s{sWo}, s28, 16\ns_mov_b32 s{sW}, s{sWo}")

    def issue_w(st):
        out = []
        if st >= NST or not loads or not lw: return out
        pre = f"s_add_u32 m0, s{sL}, {(st % RL) * SLOT}"
        if st == 8: pre += f"\ns_mov_b32 s{sW}, s{sWo}"
        elif st > 0: pre += f"\ns_add_u32 s{sW}, s{sW}, {128 * 2048}"
        else: pre += "\ns_nop 0"
        sr = S_WO if st < 8 else S_W2
        for i in range(4):
            ins = f"buffer_load_dwordx4 v{vW[i]}, s[{sr}:{sr+3}], s{sW} offen offset:{1024 * i} lds"
            out.append((pre + "\n" + ins) if i == 0 else ins)
        return out
    def issue_a(st):
        out = []
        if st >= NST or not loads or not la: return out
        base = RING[st % RA]
        for i in range(8):
            ins = f"buffer_load_dwordx4 {r(base + 4 * i, 4)}, v{vA[i >> 1]}, s[{S_ACT}:{S_ACT+3}], s{sA} offen offset:{1024 * (i & 1)}"
            if i == 0 and st > 0: ins = f"s_add_u32 s{sA}, s{sA}, {4 * 131072}\n" + ins
            out.append(ins)
        return out
    def group(st):
        return issue_w(st + 1) + issue_a(st)
    def trreads(st):
        out = []
        if st >= NST: return out
        for j in range(4):
            for t in range(2):
                out.append(f"ds_read_b64_tr_b16 {v(WF[st & 1] + 4 * j + 2 * t, 2)}, v{vT[j]} offset:{(st % RL) * SLOT + t * 2048}")
        return out
    issued = []
    def emit_vm(lst, tag):
        for x in lst:
            A(x); issued.append(tag)
    emit_vm(issue_w(0), -1)
    for st in range(P):
        emit_vm(group(st), st)
    A("v_and_b32 v14, 15, v0\nv_lshrrev_b32 v15, 4, v0")
    A("v_and_b32 v1, 1, v15\nv_lshlrev_b32 v1, 5, v1\nv_lshrrev_b32 v15, 1, v15\nv_lshl_add_u32 v1, v15, 4, v1")
    A("v_lshl_add_u32 v14, v14, 11, v1")
    A("s_lshl_b32 s35, s31, 18\ns_lshl_b32 s36, s28, 16\ns_add_u32 s35, s35, s36\ns_lshl_b32 s36, s33, 7\ns_add_u32 s35, s35, s36")
    A(f"v_add_u32 v{vO}, s35, v14\nv_add_u32 v{vtmp}, {16 * 2048}, v{vO}")
    for i in range(128):
        A(f"v_accvgpr_write_b32 a{i}, 0")
    def wait_for(tag_max):
        n = sum(1 for t in issued if t > tag_max)
        A(f"s_waitcnt vmcnt({n})")
    wait_for(-1)
    for x in trreads(0): A(x)
    xloaded = False
    for st in range(NST):
        wait_for(st)
        A("s_waitcnt lgkmcnt(0)")
        fill = [(x, None) for x in trreads(st + 1)] + [(x, st + P) for x in group(st + P)]
        if st == NST - P:
            for ti in range(2):
                for jp in range(2):
                    fill.append((f"buffer_load_dwordx4 {v(vX + 8 * ti + 4 * jp, 4)}, v{vO if ti == 0 else vtmp}, s[{S_X}:{S_X+3}], 0 offen offset:{64 * jp}", 99))
        mf = []
        base = RING[st % RA]
        for i in range(8):
            for j in (range(4) if i % 2 == 0 else reversed(range(4))):
                c = r(acc(i, j), 4)
                mf.append(f"v_mfma_f32_16x16x32_bf16 {c}, {v(WF[st & 1] + 4 * j, 4)}, {r(base + 4 * i, 4)}, {c}")
        nf = len(fill); k = 0
        for n_, m in enumerate(mf):
            if mfma: A(m)
            want = min(nf, ((n_ + 1) * nf + 27) // 28)
            while k < want:
                A(fill[k][0])
                if fill[k][1] is not None: issued.append(fill[k][1])
                k += 1
        assert k == nf
    if timing:
        A("s_memrealtime s[64:65]\ns_memtime s[66:67]")
    if reuse: A("s_barrier")
    A("v_lshlrev_b32 v1, 4, v0")
    for p in range(1, 4):
        A(f"s_add_u32 s35, s28, {p}\ns_and_b32 s35, s35, 3\ns_mul_i32 s35, s35, 24576\ns_add_u32 s35, s35, {LDS_EX + (p - 1) * 8192}")
        A(f"v_add_u32 v{1 + p}, s35, v1")
    A(f"s_mul_i32 s35, s28, 24576\ns_add_u32 s35, s35, {LDS_EX}\nv_add_u32 v1, s35, v1")
    A("s_nop 7")
    for p in range(1, 4):
        for ti in range(2):
            for j in range(4):
                A(f"ds_write_b128 v{1 + p}, {r(acc(2 * p + ti, j), 4)} offset:{(ti * 4 + j) * 1024}")
    for q in range(32):
        A(f"v_accvgpr_read_b32 v{32 + q}, a{q}")
    A("s_waitcnt vmcnt(0)")
    for ti in range(2):
        for jp in range(2):
            b = vX + 8 * ti + 4 * jp
            A(f"v_permlane16_swap_b32 v{b}, v{b+2}\nv_permlane16_swap_b32 v{b+1}, v{b+3}")
    A("s_nop 1")
    for q in range(16):
        A(f"v_lshlrev_b32 v{64 + 2 * q}, 16, v{vX + q}\nv_and_b32 v{65 + 2 * q}, 0xffff0000, v{vX + q}")
    for q in range(16):
        A(f"v_pk_add_f32 {v(32 + 2 * q, 2)}, {v(32 + 2 * q, 2)}, {v(64 + 2 * q, 2)}")
    A("s_waitcnt lgkmcnt(0)\ns_barrier")
    for sl in range(3):
        for q in range(8):
            A(f"ds_read_b128 {v(64 + 32 * sl + 4 * q, 4)}, v1 offset:{sl * 8192 + q * 1024}")
    for sl in range(3):
        for h in range(2):
            A(f"s_waitcnt lgkmcnt({min(15, 24 - 8 * sl - 4 * h - 4)})")
            for q in range(8):
                o = 16 * h + 2 * q
                A(f"v_pk_add_f32 {v(32 + o, 2)}, {v(32 + o, 2)}, {v(64 + 32 * sl + o, 2)}")
    for q in range(16):
        A(f"v_cvt_pk_bf16_f32 v{vX + q}, v{32 + 2 * q}, v{33 + 2 * q}")
    A("s_nop 1")
    for ti in range(2):
        for jp in range(2):
            b = vX + 8 * ti + 4 * jp
            A(f"v_permlane16_swap_b32 v{b}, v{b+2}\nv_permlane16_swap_b32 v{b+1}, v{b+3}")
    for ti in range(2):
        for jp in range(2):
            A(f"buffer_store_dwordx4 {v(vX + 8 * ti + 4 * jp, 4)}, v{vO if ti == 0 else vtmp}, s[{S_OUT}:{S_OUT+3}], 0 offen offset:{64 * jp}")
    if timing:
        A("s_waitcnt vmcnt(0)\ns_memrealtime s[68:69]\ns_memtime s[70:71]\ns_waitcnt lgkmcnt(0)")
        srd(A, S_X, 48, 49, 1 << 20, WS_TIME + tslot * 65536)
        A("s_lshl_b32 s35, s2, 2\ns_add_u32 s35, s35, s28\ns_lshl_b32 s35, s35, 5")
        for q, sr in enumerate((60, 62, 64, 66, 68, 70)):
            A(f"v_mov_b32 v{32 + q}, s{sr}")
        A(f"v_mov_b32 v1, s35\nv_mov_b32 v38, 0\nv_mov_b32 v39, 0")
        A(f"buffer_store_dwordx4 v[32:35], v1, s[{S_X}:{S_X+3}], 0 offen\nbuffer_store_dwordx4 v[36:39], v1, s[{S_X}:{S_X+3}], 0 offen offset:16")
    A.label(f"L_end_{name}")
    A("s_endpgm")
    lds = max(4 * WRING, LDS_EX + 98304)
    return A.text(), lds

if __name__ == "__main__":
    import sys
    for tag, kw in (("n", dict(mfma=False)), ("na", dict(mfma=False, lw=False)), ("nw", dict(mfma=False, la=False)),
      ("n1", dict(mfma=False, xmap=1)), ("na1", dict(mfma=False, lw=False, xmap=1)), ("nw1", dict(mfma=False, la=False, xmap=1)),
      ("n2", dict(mfma=False, xmap=2)), ("na2", dict(mfma=False, lw=False, xmap=2)), ("nw2", dict(mfma=False, la=False, xmap=2)),
      ("n3", dict(mfma=False, xmap=3)), ("na3", dict(mfma=False, lw=False, xmap=3)), ("nw3", dict(mfma=False, la=False, xmap=3)),
      ):
        name = f"k2{tag}_kernel"
        body, lds = gen_k2(name, timing=True, **kw)
        txt = f"; @launch kernel={name} grid=(256,1,1) block=(256,1,1) lds={lds}\n" + TARGET + kernel_header(name) + body + kernel_desc(name)
        open(f"k2_{tag}.s", "w").write(txt)
```

```python
WS_XN   = 0
XN_BYTES = 32 * 128 * 1024
WS_ACT  = 4 << 20
ACT_BYTES = 144 * 128 * 1024
WS_KV   = 24 << 20
KV_BYTES = 8 * 32 * 32768
WS_FLAG = 32 << 20
FLAG_BYTES = 8 * 32 * 128
WS_TIME = 33 << 20
ARG_X, ARG_WQKV, ARG_WO, ARG_BX, ARG_W1, ARG_W3, ARG_W2, ARG_OUT, ARG_DBG, ARG_WS = [8 * i for i in range(10)]
```

```python
import sys
from asmlib import *
from k0 import gen_k0
from k1 import gen_k1
from k2 import gen_k2
import hazard
HEAD = open("parallel_sum__sliding_block__glu_gated_swiglu__prompt.s.ref").read().split("; Override launch")[0] if len(sys.argv) > 2 and sys.argv[2] == "final" else ""
def build(path, timing=False, k0kw={}, k1kw={}, k2kw={}, head="", only=None):
    ks = []
    b, l = gen_k0("ln_kernel", timing=timing, tslot=0, **k0kw); ks.append(("ln_kernel", b, l, 512, 40, 40))
    b, l = gen_k1("gemm1_kernel", timing=timing, tslot=1, **k1kw); ks.append(("gemm1_kernel", b, l, 256, 512, 256))
    b, l = gen_k2("gemm2_kernel", timing=timing, tslot=2, **k2kw); ks.append(("gemm2_kernel", b, l, 256, 512, 256))
    if only: ks = [ks[i] for i in only]
    txt = head
    for n, b, l, bs, vg, ao in ks:
        txt += f"; @launch kernel={n} grid=(256,1,1) block=({bs},1,1) lds={l}\n"
    txt += TARGET
    for n, b, l, bs, vg, ao in ks:
        b, added = hazard.fix(b)
        if f"L_loop_{n}:" in b: hazard.check_loop(b, f"L_loop_{n}")
        txt += kernel_header(n) + b
    for n, b, l, bs, vg, ao in ks:
        txt += kernel_desc(n, vg, ao)
    open(path, "w").write(txt)
if __name__ == "__main__":
    build(sys.argv[1], timing=(len(sys.argv) > 2 and sys.argv[2] == "t"), head=HEAD)
```

```python
import sys
from asmlib import *
from layout import *
from k2 import srd
import build
base = open("../cdna_kernels/parallel_sum__sliding_block__glu_gated_swiglu__prompt.s").read()
def add(txt, name, body, where, grid=256, block=256, lds=0, vg=32):
    line = f"; @launch kernel={name} grid=({grid},1,1) block=({block},1,1) lds={lds}\n"
    lines = txt.split("\n")
    idx = [i for i, l in enumerate(lines) if l.startswith("; @launch")]
    pos = idx[0] if where == 0 else idx[where - 1] + 1
    lines.insert(pos, line.strip())
    txt = "\n".join(lines)
    if f"\n{name}:" not in txt:
        txt += kernel_header(name) + body + kernel_desc(name, vg, vg)
    return txt
empty = "    s_endpgm\n"
open("e_a.s", "w").write(base)
open("e_b.s", "w").write(add(base, "nop_kernel", empty, 0))
open("e_c.s", "w").write(add(add(base, "nop_kernel", empty, 3), "nop_kernel", empty, 3))
def pf(name, bufs):
    A = Asm()
    A(f"s_cmp_ge_u32 s2, 256\ns_cbranch_scc1 L_end_{name}")
    A("s_lshl_b32 s3, s2, 8\nv_add_u32 v1, s3, v0\nv_lshlrev_b32 v1, 7, v1")
    for n, (arg, nbytes) in enumerate(bufs):
        A(f"s_load_dwordx2 s[40:41], s[0:1], {arg}\ns_waitcnt lgkmcnt(0)")
        srd(A, 4 + 4 * n, 40, 41, nbytes)
        A(f"buffer_load_dword v{2 + n}, v1, s[{4 + 4 * n}:{7 + 4 * n}], 0 offen")
    A("s_waitcnt vmcnt(0)")
    A.label(f"L_end_{name}")
    A("s_endpgm")
    return A.text()
allw = [(ARG_WQKV, 6 << 20), (ARG_W1, 7 << 20), (ARG_W3, 7 << 20), (ARG_WO, 2 << 20), (ARG_W2, 7 << 20)]
open("e_d.s", "w").write(add(base, "pf_kernel", pf("pf_kernel", allw), 0))
open("e_e.s", "w").write(add(base, "pf_kernel", pf("pf_kernel", allw[3:]), 0))
```

```python
class Asm:
    def __init__(self):
        self.lines = []
        self.uid = 0
    def __call__(self, s):
        for l in s.split("\n"):
            l = l.strip()
            if l:
                self.lines.append(("" if l.endswith(":") else "    ") + l)
    def label(self, name):
        self.lines.append(name + ":")
    def newlabel(self, base="L"):
        self.uid += 1
        return f"{base}_{self.uid}"
    def comment(self, s):
        self.lines.append("    ; " + s)
    def text(self):
        return "\n".join(self.lines) + "\n"

def v(i, n=1):
    return f"v{i}" if n == 1 else f"v[{i}:{i+n-1}]"
def a(i, n=1):
    return f"a{i}" if n == 1 else f"a[{i}:{i+n-1}]"
def s(i, n=1):
    return f"s{i}" if n == 1 else f"s[{i}:{i+n-1}]"
def r(i, n=1):
    if i >= 256:
        return a(i - 256, n)
    assert i + n <= 256, (i, n)
    return v(i, n)

def kernel_header(name):
    return f""".text
.globl {name}
.p2align 8
.type {name},@function
{name}:
"""
def kernel_desc(name, vgpr=512, accum=256, sgpr=102, extra=""):
    return f""".section .rodata,"a"
.p2align 6
.amdhsa_kernel {name}
  .amdhsa_next_free_vgpr {vgpr}
  .amdhsa_next_free_sgpr {sgpr}
  .amdhsa_accum_offset {accum}
  .amdhsa_group_segment_fixed_size 0
  .amdhsa_kernarg_size 80
  .amdhsa_user_sgpr_count 2
  .amdhsa_user_sgpr_kernarg_segment_ptr 1
  .amdhsa_system_sgpr_workgroup_id_x 1
  .amdhsa_float_denorm_mode_32 3
{extra}.end_amdhsa_kernel
"""
TARGET = '.amdgcn_target "amdgcn-amd-amdhsa--gfx950"\n'

class Stamps:
    def __init__(self, A, on, vr, vc, s0=92):
        self.A, self.on, self.vr, self.vc, self.s0 = A, on, vr, vc, s0
    def init(self):
        if self.on:
            self.A(f"s_mov_b32 s{self.s0+4}, 0\nv_mov_b32 v{self.vr}, 0\nv_mov_b32 v{self.vc}, 0")
    def take(self):
        if self.on:
            self.A(f"s_memrealtime s[{self.s0}:{self.s0+1}]\ns_memtime s[{self.s0+2}:{self.s0+3}]")
    def commit(self):
        if self.on:
            s0 = self.s0
            self.A(f"s_lshl_b64 exec, 1, s{s0+4}\nv_mov_b32 v{self.vr}, s{s0}\nv_mov_b32 v{self.vc}, s{s0+2}\ns_mov_b64 exec, -1\ns_add_u32 s{s0+4}, s{s0+4}, 1")
    def now(self):
        if self.on:
            self.take(); self.A("s_waitcnt lgkmcnt(0)"); self.commit()
    def dump(self, ws_lo, ws_hi, off, swave, vlane, sd=4):
        if self.on:
            A = self.A
            A(f"s_add_u32 s{sd}, s{ws_lo}, {off}\ns_addc_u32 s{sd+1}, s{ws_hi}, 0\ns_mov_b32 s{sd+2}, {1 << 20}\ns_mov_b32 s{sd+3}, 0x20000")
            A(f"s_lshl_b32 s3, s2, 2\ns_add_u32 s3, s3, s{swave}\ns_lshl_b32 s3, s3, 9\nv_lshlrev_b32 v1, 2, v{vlane}")
            A(f"buffer_store_dword v{self.vr}, v1, s[{sd}:{sd+3}], s3 offen\nbuffer_store_dword v{self.vc}, v1, s[{sd}:{sd+3}], s3 offen offset:256")
```

```python
import sys
from asmlib import *
from k0 import gen_k0
from k1 import gen_k1
from k2 import gen_k2
from k2b import gen_k2b
import hazard
HEAD = open("parallel_sum__sliding_block__glu_gated_swiglu__prompt.s.ref").read().split("; Override launch")[0] if len(sys.argv) > 2 and sys.argv[2] == "final" else ""
def build(path, timing=False, k0kw={}, k1kw={}, k2kw={}, head="", only=None, k2=gen_k2b):
    ks = []
    b, l = gen_k0("ln_kernel", timing=timing, tslot=0, **k0kw); ks.append(("ln_kernel", b, l, 512, 48, 48))
    b, l = gen_k1("gemm1_kernel", timing=timing, tslot=1, **k1kw); ks.append(("gemm1_kernel", b, l, 256, 512, 256))
    b, l = k2("gemm2_kernel", timing=timing, tslot=2, **k2kw); ks.append(("gemm2_kernel", b, l, 256, 512, 256))
    if only: ks = [ks[i] for i in only]
    txt = head
    for n, b, l, bs, vg, ao in ks:
        txt += f"; @launch kernel={n} grid=(256,1,1) block=({bs},1,1) lds={l}\n"
    txt += TARGET
    for n, b, l, bs, vg, ao in ks:
        b, added = hazard.fix(b)
        if f"L_loop_{n}:" in b: hazard.check_loop(b, f"L_loop_{n}")
        txt += kernel_header(n) + b
    for n, b, l, bs, vg, ao in ks:
        txt += kernel_desc(n, vg, ao)
    open(path, "w").write(txt)
if __name__ == "__main__":
    build(sys.argv[1], timing=(len(sys.argv) > 2 and sys.argv[2] == "t"), head=HEAD)
```

```python
from asmlib import *
from layout import *
from k2 import srd

def wave_allreduce_add(A, x, t):
    for sh in (8, 4, 2, 1):
        A("s_nop 1")
        A(f"v_add_f32_dpp v{x}, v{x}, v{x} row_ror:{sh} row_mask:0xf bank_mask:0xf")
    A(f"v_mov_b32 v{t}, v{x}\ns_nop 1\nv_permlane16_swap_b32 v{t}, v{x}\ns_nop 1\nv_add_f32 v{x}, v{x}, v{t}")
    A(f"v_mov_b32 v{t}, v{x}\ns_nop 1\nv_permlane32_swap_b32 v{t}, v{x}\ns_nop 1\nv_add_f32 v{x}, v{x}, v{t}")

def round_bf16(A, x):
    A(f"v_cvt_pk_bf16_f32 v{x}, v{x}, v{x}\nv_and_b32 v{x}, 0xffff0000, v{x}")

def gen_k0(name, timing=False, tslot=0, pfsteps=0, codepf=None, pfmod=''):
    A = Asm()
    A(f"s_cmp_ge_u32 s2, 256\ns_cbranch_scc1 L_end_{name}")
    T = Stamps(A, timing, 40, 41)
    T.take()
    A(f"s_load_dwordx2 s[40:41], s[0:1], {ARG_X}\ns_load_dwordx2 s[48:49], s[0:1], {ARG_WS}")
    A(f"s_load_dwordx2 s[42:43], s[0:1], {ARG_WQKV}\ns_load_dwordx4 s[44:47], s[0:1], {ARG_W1}")
    A("s_and_b32 s20, s2, 1\ns_lshl_b32 s20, s20, 7\ns_bfe_u32 s21, s2, 0x20001\ns_lshl_b32 s22, s21, 5\ns_add_u32 s20, s20, s22\ns_lshr_b32 s22, s2, 3\ns_add_u32 s20, s20, s22")
    A("v_lshrrev_b32 v1, 6, v0\nv_and_b32 v2, 63, v0")
    A("s_lshl_b32 s3, s20, 14")
    A("v_lshlrev_b32 v3, 11, v1\nv_lshl_add_u32 v3, v2, 4, v3")
    A("s_waitcnt lgkmcnt(0)")
    T.init(); T.commit()
    srd(A, 4, 40, 41, 2048 * 2048)
    A("buffer_load_dwordx4 v[8:11], v3, s[4:7], s3 offen\nbuffer_load_dwordx4 v[12:15], v3, s[4:7], s3 offen offset:1024")
    srd(A, 8, 48, 49, XN_BYTES, WS_XN)
    srd(A, 12, 48, 49, FLAG_BYTES, WS_FLAG)
    A("s_lshl_b32 s16, s2, 7\nv_lshlrev_b32 v4, 2, v0\nv_cmp_gt_u32 vcc, 32, v0\nv_mov_b32 v5, 0x7fffffff\nv_mov_b32 v6, 0")
    A("v_cndmask_b32 v4, v5, v4, vcc\nbuffer_store_dword v6, v4, s[12:15], s16 offen")
    A(f"s_add_u32 s16, s16, {FLAG2_OFF}\nbuffer_store_dword v6, v4, s[12:15], s16 offen")
    A("v_and_b32 v4, 7, v2\nv_xor_b32 v4, v4, v1\nv_lshlrev_b32 v4, 4, v4\nv_lshl_add_u32 v4, v2, 7, v4")
    A("v_lshrrev_b32 v5, 3, v0\nv_xor_b32 v6, v0, v5\nv_and_b32 v6, 7, v6")
    A("v_lshrrev_b32 v7, 2, v5\nv_lshlrev_b32 v7, 17, v7")
    A("v_and_b32 v5, 3, v5\nv_lshl_add_u32 v5, v5, 4, v6\nv_lshl_add_u32 v5, v5, 4, v7")
    A("s_lshr_b32 s17, s20, 1\ns_lshl_b32 s17, s17, 10\ns_and_b32 s18, s20, 1\ns_lshl_b32 s18, s18, 7\ns_add_u32 s17, s17, s18")
    A(f"s_add_u32 s18, s17, {16 * 131072}")
    A("v_lshlrev_b32 v6, 4, v0")
    npf = 0
    if pfsteps:
        A("v_readfirstlane_b32 s23, v1\nv_lshrrev_b32 v42, 5, v2\nv_and_b32 v43, 31, v2")
        srd(A, 24, 44, 45, 1024 * 7168); srd(A, 28, 46, 47, 1024 * 7168); srd(A, 32, 42, 43, 1024 * 6144)
        A("v_mul_u32_u24 v44, 7168, v42\nv_lshl_add_u32 v44, v43, 7, v44\nv_cmp_gt_u32 vcc, 14, v43\nv_mov_b32 v45, 0x7ffffff0\ns_nop 0\nv_cndmask_b32 v44, v45, v44, vcc")
        A("v_mul_u32_u24 v42, 6144, v42\nv_lshl_add_u32 v42, v43, 7, v42\nv_lshrrev_b32 v46, 2, v43\nv_mul_u32_u24 v46, 1536, v46\nv_add_u32 v42, v42, v46")
        A("v_cmp_gt_u32 vcc, 12, v43\ns_nop 1\nv_cndmask_b32 v42, v45, v42, vcc")
        A(f"s_lshl_b32 s36, s23, 6\ns_lshl_b32 s37, s22, 1\ns_add_u32 s36, s36, s37")
        A(f"s_mul_i32 s37, s36, 7168\ns_mul_i32 s38, s21, 1792\ns_add_u32 s37, s37, s38")
        A(f"s_mul_i32 s36, s36, 6144\ns_lshl_b32 s38, s21, 9\ns_add_u32 s36, s36, s38")
        A(f"s_cmp_ge_u32 s23, {pfsteps}\ns_cselect_b32 s36, 0x7ffffff0, s36\ns_cselect_b32 s37, 0x7ffffff0, s37")
        A(f"buffer_load_dword v47, v42, s[32:35], s36 offen{pfmod}\nbuffer_load_dword v47, v44, s[24:27], s37 offen{pfmod}\nbuffer_load_dword v47, v44, s[28:31], s37 offen{pfmod}")
        npf += 3
    if codepf:
        A(f"s_getpc_b64 s[50:51]")
        A.label(f"L_pc_{name}")
        A(f"s_add_u32 s50, s50, {codepf[0]}-L_pc_{name}\ns_addc_u32 s51, s51, 0")
        srd(A, 52, 50, 51, codepf[1])
        A("v_lshlrev_b32 v46, 7, v0\nbuffer_load_dword v47, v46, s[52:55], 0 offen")
        npf += 1
    A(f"s_waitcnt vmcnt({2 + npf})")
    T.now()
    for q in range(8):
        A(f"v_lshlrev_b32 v{16 + 2 * q}, 16, v{8 + q}\nv_and_b32 v{17 + 2 * q}, 0xffff0000, v{8 + q}")
    A("v_pk_add_f32 v[32:33], v[16:17], v[18:19]\nv_pk_add_f32 v[34:35], v[20:21], v[22:23]")
    A("v_pk_add_f32 v[36:37], v[24:25], v[26:27]\nv_pk_add_f32 v[38:39], v[28:29], v[30:31]")
    A("v_pk_add_f32 v[32:33], v[32:33], v[34:35]\nv_pk_add_f32 v[36:37], v[36:37], v[38:39]")
    A("v_pk_add_f32 v[32:33], v[32:33], v[36:37]\nv_add_f32 v32, v32, v33")
    wave_allreduce_add(A, 32, 33)
    A("v_mul_f32 v32, 0x3a800000, v32")
    A("v_mov_b32 v34, 0\nv_mov_b32 v35, 0")
    for q in range(16):
        A(f"v_sub_f32 v36, v{16 + q}, v32\nv_fmac_f32 v{34 + (q & 1)}, v36, v36")
    A("v_add_f32 v34, v34, v35")
    wave_allreduce_add(A, 34, 33)
    A("v_mul_f32 v34, 0x3a800000, v34")
    round_bf16(A, 34)
    A("v_add_f32 v34, 0x3727c5ac, v34")
    round_bf16(A, 34)
    A("v_sqrt_f32 v34, v34\ns_nop 0")
    round_bf16(A, 34)
    A("v_rcp_f32 v34, v34")
    round_bf16(A, 32)
    for q in range(8):
        A(f"v_sub_f32 v36, v{16 + 2 * q}, v32\nv_sub_f32 v37, v{17 + 2 * q}, v32\nv_cvt_pk_bf16_f32 v38, v36, v37")
        A(f"v_lshlrev_b32 v36, 16, v38\nv_and_b32 v37, 0xffff0000, v38\nv_mul_f32 v36, v36, v34\nv_mul_f32 v37, v37, v34")
        A(f"v_cvt_pk_bf16_f32 v{8 + q}, v36, v37")
    A("ds_write_b128 v4, v[8:11]\nds_write_b128 v4, v[12:15] offset:8192")
    A("s_waitcnt lgkmcnt(0)\ns_barrier")
    A("ds_read_b128 v[8:11], v6\nds_read_b128 v[12:15], v6 offset:8192")
    A("s_waitcnt lgkmcnt(1)\nbuffer_store_dwordx4 v[8:11], v5, s[8:11], s17 offen")
    A("s_waitcnt lgkmcnt(0)\nbuffer_store_dwordx4 v[12:15], v5, s[8:11], s18 offen")
    T.now()
    if timing: A("s_waitcnt vmcnt(0)\nv_readfirstlane_b32 s28, v1\ns_and_b32 s28, s28, 3")
    T.now()
    T.dump(48, 49, WS_TIME + tslot * TSLOT, 28, 2)
    A.label(f"L_end_{name}")
    A("s_endpgm")
    return A.text(), 16384
```

```python
from asmlib import *
from layout import *
from k2 import srd
import struct
def f2u(x): return struct.unpack("<I", struct.pack("<f", x))[0]

STAGE = 40960; G_OFF = 12288; U_OFF = 26624
KV_K = 40960; KV_V = KV_K + 32768; ONES = KV_V + 32768
LDS_BYTES = 3 * STAGE

def gen_k1(name, timing=False, tslot=1, st_act="", mainonly=False, loads=True, nods=False, noloop_a=False, noloop_dma=False, pf=0, pfmod='', codepf=None, dmamod=''):
    A = Asm()
    NSTEP = 16
    vQ = [2, 3, 4]; vG = [5, 6, 7, 8, 9, 10, 11]; vA = 12; vTq = [13, 14]; vTg = 15
    def acc(j, i):
        n = j * 4 + i
        return 20 + 4 * n if n < 59 else 256 + 96 + 4 * (n - 59)
    def abuf(p, kk, i): return 256 + 32 * p + 16 * kk + 4 * i
    def bbuf(j, kk): return 256 + 64 + 8 * (j % 4) + 4 * kk
    S_XN, S_QKV, S_GU, S_ACT, S_KV, S_FL = 4, 8, 12, 16, 20, 24
    sW, sH, sM = 28, 29, 30
    sA, sQ, sG = 31, 32, 33
    sLq, sLg, sSt, sRd, sCnt = 34, 35, 36, 37, 38
    sRs = 39
    A(f"s_cmp_ge_u32 s2, 256\ns_cbranch_scc1 L_end_{name}")
    T = Stamps(A, timing, 18, 19)
    T.take()
    A(f"s_load_dwordx2 s[40:41], s[0:1], {ARG_WQKV}\ns_load_dwordx4 s[44:47], s[0:1], {ARG_W1}\ns_load_dwordx2 s[48:49], s[0:1], {ARG_WS}")
    A(f"s_load_dwordx2 s[72:73], s[0:1], {ARG_W2}\ns_load_dwordx2 s[74:75], s[0:1], {ARG_WO}")
    A(f"v_lshrrev_b32 v1, 6, v0\nv_and_b32 v0, 63, v0\nv_readfirstlane_b32 s{sW}, v1")
    sJ, sQd = 84, 85
    A(f"s_and_b32 s50, s2, 7\ns_lshr_b32 s{sJ}, s2, 3\ns_lshr_b32 s{sQd}, s50, 1\ns_and_b32 s50, s50, 1\ns_lshl_b32 s50, s50, 2")
    A(f"s_lshr_b32 s{sM}, s{sJ}, 3\ns_add_u32 s{sM}, s{sM}, s50\ns_and_b32 s52, s{sJ}, 7\ns_lshl_b32 s{sH}, s{sQd}, 3\ns_add_u32 s{sH}, s{sH}, s52")
    A(f"v_lshlrev_b32 v{vA}, 4, v0")
    def swap23(dst, src, t):
        A(f"v_and_b32 v{t}, 4, v{src}\nv_lshlrev_b32 v{t}, 1, v{t}\nv_and_b32 v{dst}, 8, v{src}\nv_lshrrev_b32 v{dst}, 1, v{dst}\nv_or_b32 v{t}, v{t}, v{dst}")
        A(f"v_and_b32 v{dst}, 0xfffffff3, v{src}\nv_or_b32 v{dst}, v{dst}, v{t}")
    A(f"s_lshl_b32 s50, s{sH}, 6\ns_mul_i32 s51, s{sW}, {16 * 6144}\ns_add_u32 s50, s50, s51")
    for i in range(3):
        A(f"v_add_u32 v16, {64 * i}, v0\nv_mul_u32_u24 v17, 5462, v16\nv_lshrrev_b32 v17, 16, v17")
        A("v_mul_u32_u24 v18, 12, v17\nv_sub_u32 v16, v16, v18")
        A("v_lshrrev_b32 v18, 1, v17\nv_and_b32 v18, 2, v18\nv_xor_b32 v16, v16, v18")
        A("v_lshrrev_b32 v18, 2, v16\nv_lshlrev_b32 v18, 11, v18\nv_and_b32 v16, 3, v16\nv_lshl_add_u32 v16, v16, 4, v18")
        swap23(18, 17, 19)
        A(f"v_mul_u32_u24 v18, 6144, v18\nv_add3_u32 v16, v16, v18, s50\nv_subrev_u32 v{vQ[i]}, {1024 * i}, v16")
    A(f"s_mul_i32 s50, s{sH}, 224\ns_and_b32 s51, s{sW}, 1\ns_mul_i32 s51, s51, {32 * 7168}\ns_add_u32 s50, s50, s51")
    A(f"s_and_b32 s52, s{sH}, 1\ns_lshl_b32 s52, s52, 1")
    for i in range(7):
        A(f"v_add_u32 v16, {64 * i}, v0\nv_mul_u32_u24 v17, 4682, v16\nv_lshrrev_b32 v17, 16, v17")
        A("v_mul_u32_u24 v18, 14, v17\nv_sub_u32 v16, v16, v18\nv_add_u32 v16, s52, v16")
        A("v_subrev_u32 v18, 14, v16\nv_min_u32 v16, v16, v18\nv_lshlrev_b32 v16, 4, v16")
        swap23(18, 17, 19)
        A(f"v_mul_u32_u24 v18, 7168, v18\nv_add3_u32 v16, v16, v18, s50\nv_subrev_u32 v{vG[i]}, {1024 * (i & 3)}, v16")
    A("v_lshrrev_b32 v16, 2, v0\nv_and_b32 v17, 7, v16\nv_and_b32 v16, 8, v16\nv_lshl_add_u32 v16, v16, 1, v17")
    A("v_and_b32 v17, 3, v0\nv_lshlrev_b32 v17, 3, v17")
    A(f"v_mul_u32_u24 v18, 224, v16\nv_add_u32 v{vTg}, v18, v17")
    A("v_mul_u32_u24 v18, 192, v16\nv_add_u32 v18, v18, v17\nv_and_b32 v17, 16, v0\nv_lshlrev_b32 v17, 1, v17")
    A(f"v_add_u32 v{vTq[0]}, v18, v17\nv_xor_b32 v17, 32, v17\nv_add_u32 v{vTq[1]}, v18, v17")
    A("s_waitcnt lgkmcnt(0)")
    T.init(); T.commit()
    srd(A, S_XN, 48, 49, XN_BYTES, WS_XN)
    srd(A, S_QKV, 40, 41, 1024 * 6144)
    A(f"s_cmp_lt_u32 s{sW}, 2\ns_cselect_b32 s50, s44, s46\ns_cselect_b32 s51, s45, s47")
    srd(A, S_GU, 50, 51, 1024 * 7168)
    A(f"s_lshl_b32 s{sA}, s{sM}, 14\ns_lshl_b32 s50, s{sW}, 12\ns_add_u32 s{sA}, s{sA}, s50")
    A(f"s_mov_b32 s{sQ}, 0\ns_mov_b32 s{sG}, 0\ns_mov_b32 s{sSt}, 0")
    A(f"s_mul_i32 s{sLq}, s{sW}, 3072\ns_mul_i32 s{sLg}, s{sW}, 7168\ns_add_u32 s{sLg}, s{sLg}, {G_OFF}")

    def a_loads(p):
        out = []
        for kk in range(2):
            for i in range(4):
                ins = f"buffer_load_dwordx4 {r(abuf(p, kk, i), 4)}, v{vA}, s[{S_XN}:{S_XN+3}], s{sA} offen offset:{1024 * i}"
                if i == 3: ins += f"\ns_add_u32 s{sA}, s{sA}, 131072"
                out.append(ins)
        return out if loads else []
    def dma():
        out = []
        for i in range(3):
            ins = f"buffer_load_dwordx4 v{vQ[i]}, s[{S_QKV}:{S_QKV+3}], s{sQ} offen offset:{1024 * i}{dmamod} lds"
            if i == 0: ins = f"s_add_u32 m0, s{sLq}, s{sSt}\n" + ins
            if i == 2: ins += f"\ns_add_u32 s{sQ}, s{sQ}, {64 * 6144}\ns_add_u32 m0, s{sLg}, s{sSt}"
            out.append(ins)
        for i in range(7):
            ins = f"buffer_load_dwordx4 v{vG[i]}, s[{S_GU}:{S_GU+3}], s{sG} offen offset:{1024 * (i & 3)}{dmamod} lds"
            if i == 3: ins += f"\ns_add_u32 m0, m0, 4096"
            if i == 6: ins += (f"\ns_add_u32 s{sG}, s{sG}, {64 * 7168}\ns_add_u32 s{sSt}, s{sSt}, {STAGE}\n"
                               f"s_cmp_eq_u32 s{sSt}, {3 * STAGE}\ns_cselect_b32 s{sSt}, 0, s{sSt}")
            out.append(ins)
        return out if loads else []
    def treads(j):
        out = []
        for kk in range(2):
            for t in range(2):
                d = r(bbuf(j, kk) + 2 * t, 2)
                if j < 6:
                    out.append(f"ds_read_b64_tr_b16 {d}, v{vTq[j & 1]} offset:{(8 * t + 32 * kk) * 192 + 32 * (j & ~1)}")
                else:
                    base = G_OFF + 32 * (j - 6) if j < 13 else U_OFF + 32 * (j - 13)
                    out.append(f"ds_read_b64_tr_b16 {d}, v{vTg} offset:{base + (8 * t + 32 * kk) * 224}")
        return out
    def mfmas(j, p, first=False):
        out = []
        order = range(4) if j % 2 == 0 else reversed(range(4))
        for n, i in enumerate(order):
            for z, kk in enumerate((0, 1) if n % 2 == 0 else (1, 0)):
                c = r(acc(j, i), 4); w = r(bbuf(j, kk), 4); x = r(abuf(p, kk, i), 4)
                ci = "0" if first and z == 0 else c
                if j in (4, 5): out.append(f"v_mfma_f32_16x16x32_bf16 {c}, {x}, {w}, {ci}")
                else: out.append(f"v_mfma_f32_16x16x32_bf16 {c}, {w}, {x}, {ci}")
        return out
    for x in dma(): A(x)
    for x in a_loads(0): A(x)
    for x in dma(): A(x)
    srd(A, S_ACT, 48, 49, ACT_BYTES, WS_ACT)
    srd(A, S_KV, 48, 49, KV_BYTES, WS_KV)
    srd(A, S_FL, 48, 49, FLAG_BYTES, WS_FLAG)
    S_PF, sP, sPs, vP = 64, 68, 69, 17
    if pf:
        A(f"s_cmp_eq_u32 s{sW}, 1\ns_cselect_b32 s50, s40, s{S_GU}\ns_cselect_b32 s51, s41, s{S_GU+1}\ns_cselect_b32 s52, {1024 * 6144}, s{S_GU+2}")
        A(f"s_cmp_eq_u32 s{sW}, 3\ns_cselect_b32 s{S_PF}, s72, s50\ns_cselect_b32 s{S_PF+1}, s73, s51\ns_cselect_b32 s{S_PF+2}, {3584 * 2048}, s52\ns_mov_b32 s{S_PF+3}, 0x20000")
        A(f"s_mov_b32 s53, 7168\ns_mov_b32 s54, 14\ns_mul_i32 s55, s{sQd}, 1792\ns_mul_i32 s56, s{sJ}, {2 * 7168}\ns_add_u32 s55, s55, s56\ns_add_u32 s55, s55, {pf * 64 * 7168}\ns_mov_b32 s{sPs}, {64 * 7168}")
        A(f"s_lshl_b32 s57, s{sQd}, 9\ns_mul_i32 s56, s{sJ}, {2 * 6144}\ns_add_u32 s57, s57, s56\ns_add_u32 s57, s57, {pf * 64 * 6144}")
        A(f"s_cmp_eq_u32 s{sW}, 1\ns_cselect_b32 s53, 6144, s53\ns_cselect_b32 s54, 12, s54\ns_cselect_b32 s55, s57, s55\ns_cselect_b32 s{sPs}, {64 * 6144}, s{sPs}\ns_cselect_b32 s58, 1536, 0")
        A(f"s_mul_i32 s57, s{sQd}, {896 * 2048}\ns_mul_i32 s56, s{sJ}, {28 * 2048}\ns_add_u32 s57, s57, s56")
        A(f"s_cmp_eq_u32 s{sW}, 3\ns_cselect_b32 s53, 2048, s53\ns_cselect_b32 s54, 16, s54\ns_cselect_b32 s{sP}, s57, s55\ns_cselect_b32 s{sPs}, 4096, s{sPs}")
        A(f"v_lshrrev_b32 v16, 5, v0\nv_mul_u32_u24 v16, s53, v16\nv_and_b32 v1, 31, v0\nv_lshl_add_u32 v16, v1, 7, v16")
        A(f"v_lshrrev_b32 v{vP}, 2, v1\nv_mul_u32_u24 v{vP}, s58, v{vP}\nv_add_u32 v16, v16, v{vP}")
        A(f"v_cmp_gt_u32 vcc, s54, v1\nv_mov_b32 v1, 0x7ffffff0\nv_cndmask_b32 v{vP}, v1, v16, vcc")
    def pfi():
        return [f"buffer_load_dword v16, v{vP}, s[{S_PF}:{S_PF+3}], s{sP} offen{pfmod}\ns_add_u32 s{sP}, s{sP}, s{sPs}"] if pf else []
    if codepf:
        A(f"s_getpc_b64 s[50:51]")
        A.label(f"L_pc_{name}")
        A(f"s_add_u32 s50, s50, {codepf[0]}-L_pc_{name}\ns_addc_u32 s51, s51, 0")
        srd(A, 76, 50, 51, codepf[1])
    A(f"s_mov_b32 s{sRs}, 0\ns_mov_b32 s42, {(-2 * STAGE) & 0xffffffff}\ns_mov_b32 s43, {STAGE}")
    nvm = 18 if loads else 0
    T.now()
    A(f"s_waitcnt vmcnt({10 if loads else 0})\ns_barrier")
    T.now()
    for j in range(4 if nods else 3):
        for x in treads(j): A(x)
    if noloop_a:
        for x in a_loads(1): A(x)
    if noloop_dma:
        for x in dma(): A(x)

    def step(p, do_a, do_dma, last, vm_start, vm_beta, first=False, do_pf=False, extra=[]):
        vm = (a_loads(1 - p) if do_a and not noloop_a else []) + (dma() if do_dma and not noloop_dma else [])
        slots = [[] for _ in range(20)]
        for n, x in enumerate(vm):
            slots[min(n * 17 // max(len(vm), 17), 16)].append(x)
        for j in range(20):
            if j == 0 and vm_start is not None:
                A(f"s_waitcnt vmcnt({vm_start}) lgkmcnt(8)")
            elif j == 0:
                A("s_waitcnt lgkmcnt(8)")
            elif j == 17:
                if not last:
                    A(f"s_waitcnt vmcnt({vm_beta}) lgkmcnt(0)\ns_barrier")
                    T.commit()
                else:
                    A("s_waitcnt lgkmcnt(0)")
            elif j < 17 or not last:
                if j not in (18, 19): A("s_waitcnt lgkmcnt(8)")
            fill = []
            if j == 16 and not last: T.take()
            if j == 16 and not last:
                rot = (f"s_add_u32 s{sRs}, s{sRs}, 1\ns_cmp_eq_u32 s{sRs}, 3\ns_cselect_b32 s{sRd}, s42, s43\n"
                       f"s_cselect_b32 s{sRs}, 0, s{sRs}")
            if nods: pass
            elif j + 3 < 20: fill += treads(j + 3)
            elif not last: fill += treads(j + 3 - 20)
            fill += slots[j]
            if j == 17 and do_pf: fill += pfi()
            if j == 18: fill += extra
            if j == 16 and not last:
                fill.append(rot)
                fill.append(f"v_add_u32 v{vTq[0]}, s{sRd}, v{vTq[0]}\nv_add_u32 v{vTq[1]}, s{sRd}, v{vTq[1]}")
                fill.append(f"v_add_u32 v{vTg}, s{sRd}, v{vTg}")
            ms = mfmas(j, p, first)
            k = 0
            for n, m in enumerate(ms):
                A(m)
                want = min(len(fill), (len(fill) * (n + 1) + 6) // 7)
                while k < want:
                    A(fill[k]); k += 1
    e = 1 if pf else 0
    step(0, True, True, False, None, 18, first=True, do_pf=True)
    A(f"s_mov_b32 s{sCnt}, 6")
    A.label(f"L_loop_{name}")
    step(1, True, True, False, 10 + e, 18 + e, do_pf=True)
    step(0, True, True, False, 10 + e, 18 + e, do_pf=True)
    A(f"s_sub_u32 s{sCnt}, s{sCnt}, 1\ns_cmp_lg_u32 s{sCnt}, 0\ns_cbranch_scc1 L_loop_{name}")
    step(1, True, True, False, 10 + e, 18 + e, do_pf=True)
    ex = []
    if pf:
        srd(A, S_PF, 74, 75, 1024 * 2048)
        A(f"s_lshl_b32 s{sP}, s{sQd}, 19\ns_lshl_b32 s50, s{sJ}, 14\ns_add_u32 s{sP}, s{sP}, s50\ns_lshl_b32 s50, s{sW}, 12\ns_add_u32 s{sP}, s{sP}, s50")
        A(f"v_and_b32 v{vP}, 31, v0\nv_lshlrev_b32 v{vP}, 7, v{vP}")
        ex += [f"buffer_load_dword v16, v{vP}, s[{S_PF}:{S_PF+3}], s{sP} offen{pfmod}"]
    if codepf:
        A(f"v_lshlrev_b32 v1, 7, v0\ns_lshl_b32 s50, s{sW}, 13")
        ex += [f"buffer_load_dword v16, v1, s[76:79], s50 offen"]
    step(0, True, False, False, 10 + e, 8 + e, extra=ex)
    step(1, False, False, True, len(ex), None)
    T.now()

    if not mainonly:
        epilogue(A, name, acc, S_ACT, S_KV, S_FL, sW, sH, sM, vA, st_act, T)
    T.now()
    if timing: A("s_waitcnt vmcnt(0)")
    T.now()
    T.dump(48, 49, WS_TIME + tslot * TSLOT, sW, 0)
    A.label(f"L_end_{name}")
    A("s_endpgm")
    return A.text(), LDS_BYTES

def epilogue(A, name, acc, S_ACT, S_KV, S_FL, sW, sH, sM, vA, st_act, TS):
    def pack2(dst, a, b):
        A(f"v_cvt_pk_bf16_f32 v{dst}, v{a}, v{a+1}\nv_cvt_pk_bf16_f32 v{dst+1}, v{a+2}, v{a+3}")
        A(f"v_cvt_pk_bf16_f32 v{dst+2}, v{b}, v{b+1}\nv_cvt_pk_bf16_f32 v{dst+3}, v{b+2}, v{b+3}")
    A(f"s_lshl_b32 s50, s{sM}, 5\ns_add_u32 s50, s50, s{sH}")
    A(f"s_lshl_b32 s51, s50, 15\ns_lshl_b32 s52, s{sW}, 13\ns_add_u32 s51, s51, s52")
    A(f"s_add_u32 s53, s51, 4096")
    A(f"s_lshl_b32 s54, s{sW}, 12\nv_add_u32 v1, s54, v{vA}")
    A(f"v_add_u32 v2, {KV_K + 16384}, v1\nv_add_u32 v3, {KV_V + 16384}, v1")
    for i in range(4):
        pack2(acc(2, i), acc(2, i), acc(3, i))
        A(f"buffer_store_dwordx4 {v(acc(2, i), 4)}, v{vA}, s[{S_KV}:{S_KV+3}], s51 offen offset:{1024 * i} sc1")
        A(f"ds_write_b128 v2, {v(acc(2, i), 4)} offset:{1024 * i}")
    for b in range(2):
        for dt in range(2):
            d = acc(4 + dt, 2 * b)
            pack2(d, d, acc(4 + dt, 2 * b + 1))
            A(f"buffer_store_dwordx4 {v(d, 4)}, v{vA}, s[{S_KV}:{S_KV+3}], s53 offen offset:{2048 * b + 1024 * dt} sc1")
            A(f"ds_write_b128 v3, {v(d, 4)} offset:{2048 * b + 1024 * dt}")
    for i in range(4):
        pack2(acc(0, i), acc(0, i), acc(1, i))
    A(f"s_cmp_eq_u32 s{sM}, 0\ns_cselect_b32 s55, 32, 0\nv_mov_b32 v4, 0x3f803f80\nv_cmp_le_u32 vcc, s55, v0")
    A(f"v_lshlrev_b32 v5, 2, v0\nv_add_u32 v5, {ONES}, v5\nv_cndmask_b32 v4, 0, v4, vcc\nds_write_b32 v5, v4")
    A(f"s_mov_b32 s56, {f2u(-1.4426950408889634)}\ns_mov_b32 s57, s56\ns_mov_b32 s58, 1.0\ns_mov_b32 s59, 1.0")
    A(f"s_lshr_b32 s76, s{sH}, 1\ns_mul_i32 s76, s76, 7\ns_add_u32 s76, s76, 32\ns_and_b32 s77, s{sH}, 1")
    A(f"s_lshl_b32 s78, s{sM}, 14\ns_add_u32 s78, s78, s54")
    A("s_add_u32 s79, s76, 3\ns_lshl_b32 s79, s79, 17\ns_add_u32 s79, s79, s78\ns_lshl_b32 s80, s77, 3\ns_add_u32 s79, s79, s80")
    A("s_lshl_b32 s80, s77, 2\ns_add_u32 s76, s76, s80\ns_lshl_b32 s76, s76, 17\ns_add_u32 s76, s76, s78")
    A(f"s_lshl_b32 s80, s{sH}, 17\ns_add_u32 s78, s78, s80")
    T = 36
    def silu_tile(jj, i, dst, tb):
        g = acc(6 + jj, i); u = acc(13 + jj, i)
        if u >= 256:
            for q in range(4): A(f"v_accvgpr_read_b32 v{tb + 4 + q}, a{u - 256 + q}")
            u = tb + 4
        A(f"v_pk_mul_f32 {v(tb, 2)}, {v(g, 2)}, s[56:57]\nv_pk_mul_f32 {v(tb + 2, 2)}, {v(g + 2, 2)}, s[56:57]")
        for q in range(4): A(f"v_exp_f32 v{tb + q}, v{tb + q}")
        A(f"v_pk_mul_f32 {v(tb + 4, 2)}, {v(g, 2)}, {v(u, 2)}\nv_pk_mul_f32 {v(tb + 6, 2)}, {v(g + 2, 2)}, {v(u + 2, 2)}")
        A(f"v_pk_add_f32 {v(tb, 2)}, {v(tb, 2)}, s[58:59]\nv_pk_add_f32 {v(tb + 2, 2)}, {v(tb + 2, 2)}, s[58:59]")
        for q in range(4): A(f"v_rcp_f32 v{tb + q}, v{tb + q}")
        A(f"v_pk_mul_f32 {v(tb + 4, 2)}, {v(tb + 4, 2)}, {v(tb, 2)}\nv_pk_mul_f32 {v(tb + 6, 2)}, {v(tb + 6, 2)}, {v(tb + 2, 2)}")
        A(f"v_cvt_pk_bf16_f32 v{dst}, v{tb + 4}, v{tb + 5}\nv_cvt_pk_bf16_f32 v{dst + 1}, v{tb + 6}, v{tb + 7}")
    nst = 0
    for p in range(3):
        for i in range(4):
            d = acc(6 + 2 * p, i)
            silu_tile(2 * p, i, d, T)
            silu_tile(2 * p + 1, i, d + 2, T + 8)
            A(f"buffer_store_dwordx4 {v(d, 4)}, v{vA}, s[{S_ACT}:{S_ACT+3}], s76 offen offset:{1024 * i}{st_act}")
            nst += 1
        A("s_add_u32 s76, s76, 131072")
        if p == 0:
            A(f"s_waitcnt vmcnt({nst})")
            A(f"s_lshl_b32 s81, s50, 7\ns_lshl_b32 s82, s{sW}, 2\ns_add_u32 s81, s81, s82\nv_mov_b32 v5, 0\nv_mov_b32 v6, 1")
            A(f"s_mov_b64 exec, 1\nbuffer_store_dword v6, v5, s[{S_FL}:{S_FL+3}], s81 offen sc1\ns_mov_b64 exec, -1")
    for i in range(4):
        d = acc(12, i)
        silu_tile(6, i, d, T + 8 * (i & 1))
        A(f"buffer_store_dwordx2 {v(d, 2)}, v{vA}, s[{S_ACT}:{S_ACT+3}], s79 offen offset:{1024 * i}{st_act}")
    TS.now()
    A("s_waitcnt lgkmcnt(0)\ns_barrier")
    A(f"s_cmp_eq_u32 s{sM}, 0\ns_cbranch_scc1 L_first_{name}")
    A(f"s_sub_u32 s81, s81, {32 * 128}\ns_sub_u32 s51, s51, {32 * 32768}\ns_sub_u32 s53, s53, {32 * 32768}\nv_mov_b32 v5, 0")
    A.label(f"L_poll_{name}")
    A(f"buffer_load_dword v6, v5, s[{S_FL}:{S_FL+3}], s81 offen sc1\ns_waitcnt vmcnt(0)\nv_readfirstlane_b32 s82, v6")
    A(f"s_cmp_eq_u32 s82, 1\ns_cbranch_scc0 L_poll_{name}")
    A(f"s_add_u32 m0, s54, {KV_K}")
    for i in range(4):
        A(f"buffer_load_dwordx4 v{vA}, s[{S_KV}:{S_KV+3}], s51 offen offset:{1024 * i} sc1 lds")
    A(f"s_add_u32 m0, s54, {KV_V}")
    for i in range(4):
        A(f"buffer_load_dwordx4 v{vA}, s[{S_KV}:{S_KV+3}], s53 offen offset:{1024 * i} sc1 lds")
    A(f"s_branch L_join_{name}")
    A.label(f"L_first_{name}")
    A(f"v_and_b32 v5, 48, v0\nv_lshlrev_b32 v5, 4, v5\nv_add_u32 v5, {KV_K + 16384}, v5\nds_read_b128 v[36:39], v5")
    A(f"v_mov_b32 v40, 0\nv_mov_b32 v41, 0\nv_mov_b32 v42, 0\nv_mov_b32 v43, 0")
    A(f"v_add_u32 v2, {KV_K}, v1\nv_add_u32 v3, {KV_V}, v1\ns_waitcnt lgkmcnt(0)")
    for i in range(4):
        A(f"ds_write_b128 v2, v[36:39] offset:{1024 * i}\nds_write_b128 v3, v[40:43] offset:{1024 * i}")
    A.label(f"L_join_{name}")
    MF, ML = 220, 224
    A(f"v_lshrrev_b32 v5, 4, v0\nv_lshlrev_b32 v5, 2, v5\nv_and_b32 v6, 15, v0\nv_mov_b32 v7, {f2u(-1e30)}")
    for q in range(4):
        A(f"v_add_u32 v8, {q}, v5\nv_cmp_gt_u32 vcc, v8, v6\nv_cndmask_b32 v{MF + q}, v7, 0, vcc\nv_cndmask_b32 v{ML + q}, 0, v7, vcc")
    A(f"v_add_u32 v2, {KV_K}, v1\nv_add_u32 v3, {KV_V}, v1")
    A(f"s_lshl_b32 s82, s{sW}, 5\ns_add_u32 s82, s82, {ONES}\nv_mov_b32 v4, s82")
    A(f"s_mov_b32 s56, {f2u(0.17677669529663687 * 1.4426950408889634)}\ns_mov_b32 s57, s56")
    A("s_waitcnt vmcnt(0) lgkmcnt(0)\ns_barrier")
    TS.now()
    KF = lambda n: 256 + 4 * n
    VF = lambda B, dt: 256 + 80 + 8 * B + 4 * dt
    OF = lambda B: 256 + 160 + 4 * B
    for n in range(20): A(f"ds_read_b128 {r(KF(n), 4)}, v2 offset:{1024 * n}")
    for B in range(10):
        for dt in range(2): A(f"ds_read_b128 {r(VF(B, dt), 4)}, v3 offset:{2048 * B + 1024 * dt}")
        A(f"ds_read_b128 {r(OF(B), 4)}, v4 offset:{16 * B}")
    S = lambda qi, n: 52 + 72 * qi + 4 * n
    O = lambda qi, t: 196 + 12 * qi + 4 * t
    A("s_waitcnt lgkmcnt(0)")
    for b in range(2):
        TS.now()
        for n in range(18):
            for qi in range(2):
                if n == 17 - 17 * qi: continue
                first = (n == qi); lastt = (n == 16 + qi)
                c = v(MF, 4) if first else v(ML, 4) if lastt else "0"
                A(f"v_mfma_f32_16x16x32_bf16 {v(S(qi, n), 4)}, {r(KF(2 * b + n), 4)}, {v(acc(0, 2 * b + qi), 4)}, {c}")
        for qi in range(2):
            rs = [S(qi, n) + q for n in range(qi, 17 + qi) for q in range(4)]
            m0_, m1_ = 228 + 4 * qi, 229 + 4 * qi
            A(f"v_max3_f32 v{m0_}, v{rs[0]}, v{rs[1]}, v{rs[2]}\nv_max3_f32 v{m1_}, v{rs[3]}, v{rs[4]}, v{rs[5]}")
            k = 6; t = 0
            while k + 1 < len(rs):
                mm = (m0_, m1_)[t]; t ^= 1
                A(f"v_max3_f32 v{mm}, v{mm}, v{rs[k]}, v{rs[k + 1]}"); k += 2
            assert k == len(rs)
            A(f"v_max_f32 v{m0_}, v{m0_}, v{m1_}\nv_mov_b32 v{m1_}, v{m0_}\nv_permlane16_swap_b32 v{m1_}, v{m0_}")
            A(f"v_max_f32 v{m0_}, v{m0_}, v{m1_}\nv_mov_b32 v{m1_}, v{m0_}\nv_permlane32_swap_b32 v{m1_}, v{m0_}")
            A(f"v_max_f32 v{m0_}, v{m0_}, v{m1_}\nv_mul_f32 v{m0_}, s56, v{m0_}\nv_sub_f32 v{m0_}, 0, v{m0_}\nv_mov_b32 v{m1_}, v{m0_}")
            for n in range(qi, 17 + qi):
                s_ = S(qi, n)
                A(f"v_pk_fma_f32 {v(s_, 2)}, {v(s_, 2)}, s[56:57], {v(m0_, 2)}\nv_pk_fma_f32 {v(s_ + 2, 2)}, {v(s_ + 2, 2)}, s[56:57], {v(m0_, 2)}")
                for q in range(4): A(f"v_exp_f32 v{s_ + q}, v{s_ + q}")
            for B in range(9):
                s0, s1 = S(qi, 2 * B), S(qi, 2 * B + 1)
                if qi == 1 and B == 0:
                    A(f"v_mov_b32 v{s0}, 0\nv_mov_b32 v{s0 + 1}, 0")
                else:
                    A(f"v_cvt_pk_bf16_f32 v{s0}, v{s0}, v{s0 + 1}\nv_cvt_pk_bf16_f32 v{s0 + 1}, v{s0 + 2}, v{s0 + 3}")
                if qi == 0 and B == 8:
                    A(f"v_mov_b32 v{s0 + 2}, 0\nv_mov_b32 v{s0 + 3}, 0")
                else:
                    A(f"v_cvt_pk_bf16_f32 v{s0 + 2}, v{s1}, v{s1 + 1}\nv_cvt_pk_bf16_f32 v{s0 + 3}, v{s1 + 2}, v{s1 + 3}")
            for B in range(9):
                for t in range(3):
                    src = OF(b + B) if t == 2 else VF(b + B, t)
                    c = "0" if B == 0 else v(O(qi, t), 4)
                    A(f"v_mfma_f32_16x16x32_bf16 {v(O(qi, t), 4)}, {r(src, 4)}, {v(S(qi, 2 * B), 4)}, {c}")
        for qi in range(2):
            A(f"v_rcp_f32 v236, v{O(qi, 2)}\nv_mov_b32 v237, v236")
            for t in range(2):
                o = O(qi, t)
                A(f"v_pk_mul_f32 {v(o, 2)}, {v(o, 2)}, v[236:237]\nv_pk_mul_f32 {v(o + 2, 2)}, {v(o + 2, 2)}, v[236:237]")
            d = 240 + 4 * qi
            pack2(d, O(qi, 0), O(qi, 1))
            A(f"buffer_store_dwordx4 {v(d, 4)}, v{vA}, s[{S_ACT}:{S_ACT+3}], s78 offen offset:{1024 * (2 * b + qi)}{st_act}")
```

```python
from asmlib import *
from layout import *

def srd(A, d, base_lo, base_hi, nbytes, add=0):
    if add:
        A(f"s_add_u32 s{d}, s{base_lo}, {add}\ns_addc_u32 s{d+1}, s{base_hi}, 0")
    else:
        A(f"s_mov_b32 s{d}, s{base_lo}\ns_mov_b32 s{d+1}, s{base_hi}")
    A(f"s_mov_b32 s{d+2}, {nbytes}\ns_mov_b32 s{d+3}, 0x20000")

def gen_k2(name, P=3, mfma=True, timing=False, loads=True, tslot=0, la=True, lw=True, xmap=0):
    A = Asm()
    NST = 36
    RA = P + 1; RL = P + 1
    LDS_EX = 65536 if RL <= 4 else None
    SLOT = 4096
    WRING = RL * SLOT
    reuse = LDS_EX is None
    if reuse: LDS_EX = 0
    ACC = 256
    def acc(i, j): return ACC + (i * 4 + j) * 4
    ring_regs = []
    avail = [256 + 128 + 32 * k for k in range(4)] + [64 + 32 * k for k in range(6)]
    RING = avail[:RA]
    WF = [32, 48]
    vA = [2, 3, 4, 5]; vW = [6, 7, 8, 9]; vT = [10, 11, 12, 13]
    vX = 16
    vO = 14; vtmp = 15
    S_ACT, S_WO, S_W2, S_X, S_OUT = 4, 8, 12, 16, 20
    sW, sA, sWo, sL = 24, 25, 26, 27
    A(f"s_cmp_ge_u32 s2, 256\ns_cbranch_scc1 L_end_{name}")
    T = Stamps(A, timing, 254, 255)
    T.take()
    A(f"s_load_dwordx2 s[40:41], s[0:1], {ARG_X}\ns_load_dwordx2 s[42:43], s[0:1], {ARG_WO}")
    A(f"s_load_dwordx4 s[44:47], s[0:1], {ARG_W2}\ns_load_dwordx2 s[48:49], s[0:1], {ARG_WS}")
    A("v_lshrrev_b32 v1, 6, v0\nv_and_b32 v0, 63, v0\ns_nop 0\nv_readfirstlane_b32 s28, v1")
    A("s_and_b32 s29, s2, 7\ns_lshr_b32 s30, s2, 3")
    if xmap == 0:
        A("s_lshr_b32 s31, s29, 1\ns_lshl_b32 s31, s31, 2\ns_and_b32 s32, s30, 3\ns_add_u32 s31, s31, s32")
        A("s_and_b32 s33, s29, 1\ns_lshl_b32 s33, s33, 3\ns_lshr_b32 s34, s30, 2\ns_add_u32 s33, s33, s34")
    elif xmap == 1:
        A("s_lshl_b32 s31, s29, 1\ns_and_b32 s32, s30, 1\ns_add_u32 s31, s31, s32\ns_lshr_b32 s33, s30, 1")
    elif xmap == 2:
        A("s_mov_b32 s31, 0\ns_mov_b32 s33, 0")
    elif xmap == 3:
        A("s_mov_b32 s31, s29\ns_and_b32 s33, s30, 15")
    for p in range(4):
        A(f"s_add_u32 s35, s28, {p}\ns_and_b32 s35, s35, 3\ns_lshl_b32 s35, s35, 11")
        A(f"v_lshl_add_u32 v{vA[p]}, v0, 4, s35")
    A("v_lshrrev_b32 v14, 3, v0")
    A("v_and_b32 v15, 7, v0")
    A("v_and_b32 v1, 6, v14")
    A("v_xor_b32 v15, v15, v1")
    A("v_lshlrev_b32 v15, 4, v15\nv_lshl_add_u32 v15, v14, 11, v15")
    A("s_lshl_b32 s35, s33, 7")
    A(f"v_add_u32 v{vW[0]}, s35, v15")
    for i in range(1, 4):
        A(f"v_add_u32 v{vW[i]}, {i * (8 * 2048 - 1024)}, v{vW[0]}")
    A(f"s_mul_i32 s{sL}, s28, {WRING}")
    A("v_lshrrev_b32 v14, 2, v0")
    A("v_lshrrev_b32 v1, 3, v0\nv_and_b32 v1, 3, v1")
    A("v_and_b32 v15, 3, v0\nv_lshlrev_b32 v15, 3, v15\nv_lshl_add_u32 v15, v14, 7, v15")
    A(f"v_add_u32 v15, s{sL}, v15")
    for j in range(4):
        A(f"v_xor_b32 v14, {j}, v1\nv_lshl_add_u32 v{vT[j]}, v14, 5, v15")
    A("s_waitcnt lgkmcnt(0)")
    T.init(); T.commit()
    srd(A, S_ACT, 48, 49, ACT_BYTES, WS_ACT)
    srd(A, S_WO, 42, 43, 1024 * 2048)
    srd(A, S_W2, 44, 45, 3584 * 2048)
    srd(A, S_X, 40, 41, 2048 * 2048)
    srd(A, S_OUT, 46, 47, 2048 * 2048)
    A(f"s_lshl_b32 s{sA}, s28, 17\ns_lshl_b32 s35, s31, 13\ns_add_u32 s{sA}, s{sA}, s35")
    A(f"s_lshl_b32 s{sWo}, s28, 16\ns_mov_b32 s{sW}, s{sWo}")

    def issue_w(st):
        out = []
        if st >= NST or not loads or not lw: return out
        pre = f"s_add_u32 m0, s{sL}, {(st % RL) * SLOT}"
        if st == 8: pre += f"\ns_mov_b32 s{sW}, s{sWo}"
        elif st > 0: pre += f"\ns_add_u32 s{sW}, s{sW}, {128 * 2048}"
        else: pre += "\ns_nop 0"
        sr = S_WO if st < 8 else S_W2
        for i in range(4):
            ins = f"buffer_load_dwordx4 v{vW[i]}, s[{sr}:{sr+3}], s{sW} offen offset:{1024 * i} lds"
            out.append((pre + "\n" + ins) if i == 0 else ins)
        return out
    def issue_a(st):
        out = []
        if st >= NST or not loads or not la: return out
        base = RING[st % RA]
        for i in range(8):
            ins = f"buffer_load_dwordx4 {r(base + 4 * i, 4)}, v{vA[i >> 1]}, s[{S_ACT}:{S_ACT+3}], s{sA} offen offset:{1024 * (i & 1)}"
            if i == 0 and st > 0: ins = f"s_add_u32 s{sA}, s{sA}, {4 * 131072}\n" + ins
            out.append(ins)
        return out
    def group(st):
        return issue_w(st + 1) + issue_a(st)
    def trreads(st):
        out = []
        if st >= NST: return out
        for j in range(4):
            for t in range(2):
                out.append(f"ds_read_b64_tr_b16 {v(WF[st & 1] + 4 * j + 2 * t, 2)}, v{vT[j]} offset:{(st % RL) * SLOT + t * 2048}")
        return out
    issued = []
    def emit_vm(lst, tag):
        for x in lst:
            A(x); issued.append(tag)
    emit_vm(issue_w(0), -1)
    for st in range(P):
        emit_vm(group(st), st)
    A("v_and_b32 v14, 15, v0\nv_lshrrev_b32 v15, 4, v0")
    A("v_and_b32 v1, 1, v15\nv_lshlrev_b32 v1, 5, v1\nv_lshrrev_b32 v15, 1, v15\nv_lshl_add_u32 v1, v15, 4, v1")
    A("v_lshl_add_u32 v14, v14, 11, v1")
    A("s_lshl_b32 s35, s31, 18\ns_lshl_b32 s36, s28, 16\ns_add_u32 s35, s35, s36\ns_lshl_b32 s36, s33, 7\ns_add_u32 s35, s35, s36")
    A(f"v_add_u32 v{vO}, s35, v14\nv_add_u32 v{vtmp}, {16 * 2048}, v{vO}")
    for i in range(128):
        A(f"v_accvgpr_write_b32 a{i}, 0")
    def wait_for(tag_max):
        n = sum(1 for t in issued if t > tag_max)
        A(f"s_waitcnt vmcnt({n})")
    wait_for(-1)
    for x in trreads(0): A(x)
    xloaded = False
    for st in range(NST):
        wait_for(st)
        A("s_waitcnt lgkmcnt(0)")
        if st % 4 == 1: T.commit()
        if st % 4 == 0: T.take()
        fill = [(x, None) for x in trreads(st + 1)] + [(x, st + P) for x in group(st + P)]
        if st == NST - P:
            for ti in range(2):
                for jp in range(2):
                    fill.append((f"buffer_load_dwordx4 {v(vX + 8 * ti + 4 * jp, 4)}, v{vO if ti == 0 else vtmp}, s[{S_X}:{S_X+3}], 0 offen offset:{64 * jp}", 99))
        mf = []
        base = RING[st % RA]
        for i in range(8):
            for j in (range(4) if i % 2 == 0 else reversed(range(4))):
                c = r(acc(i, j), 4)
                mf.append(f"v_mfma_f32_16x16x32_bf16 {c}, {v(WF[st & 1] + 4 * j, 4)}, {r(base + 4 * i, 4)}, {c}")
        nf = len(fill); k = 0
        for n_, m in enumerate(mf):
            if mfma: A(m)
            want = min(nf, ((n_ + 1) * nf + 27) // 28)
            while k < want:
                A(fill[k][0])
                if fill[k][1] is not None: issued.append(fill[k][1])
                k += 1
        assert k == nf
    T.now()
    if reuse: A("s_barrier")
    A("v_lshlrev_b32 v1, 4, v0")
    for p in range(1, 4):
        A(f"s_add_u32 s35, s28, {p}\ns_and_b32 s35, s35, 3\ns_mul_i32 s35, s35, 24576\ns_add_u32 s35, s35, {LDS_EX + (p - 1) * 8192}")
        A(f"v_add_u32 v{1 + p}, s35, v1")
    A(f"s_mul_i32 s35, s28, 24576\ns_add_u32 s35, s35, {LDS_EX}\nv_add_u32 v1, s35, v1")
    A("s_nop 7")
    for p in range(1, 4):
        for ti in range(2):
            for j in range(4):
                A(f"ds_write_b128 v{1 + p}, {r(acc(2 * p + ti, j), 4)} offset:{(ti * 4 + j) * 1024}")
    for q in range(32):
        A(f"v_accvgpr_read_b32 v{32 + q}, a{q}")
    A("s_waitcnt vmcnt(0)")
    for ti in range(2):
        for jp in range(2):
            b = vX + 8 * ti + 4 * jp
            A(f"v_permlane16_swap_b32 v{b}, v{b+2}\nv_permlane16_swap_b32 v{b+1}, v{b+3}")
    A("s_nop 1")
    for q in range(16):
        A(f"v_lshlrev_b32 v{64 + 2 * q}, 16, v{vX + q}\nv_and_b32 v{65 + 2 * q}, 0xffff0000, v{vX + q}")
    for q in range(16):
        A(f"v_pk_add_f32 {v(32 + 2 * q, 2)}, {v(32 + 2 * q, 2)}, {v(64 + 2 * q, 2)}")
    A("s_waitcnt lgkmcnt(0)\ns_barrier")
    for sl in range(3):
        for q in range(8):
            A(f"ds_read_b128 {v(64 + 32 * sl + 4 * q, 4)}, v1 offset:{sl * 8192 + q * 1024}")
    for sl in range(3):
        for h in range(2):
            A(f"s_waitcnt lgkmcnt({min(15, 24 - 8 * sl - 4 * h - 4)})")
            for q in range(8):
                o = 16 * h + 2 * q
                A(f"v_pk_add_f32 {v(32 + o, 2)}, {v(32 + o, 2)}, {v(64 + 32 * sl + o, 2)}")
    for q in range(16):
        A(f"v_cvt_pk_bf16_f32 v{vX + q}, v{32 + 2 * q}, v{33 + 2 * q}")
    A("s_nop 1")
    for ti in range(2):
        for jp in range(2):
            b = vX + 8 * ti + 4 * jp
            A(f"v_permlane16_swap_b32 v{b}, v{b+2}\nv_permlane16_swap_b32 v{b+1}, v{b+3}")
    for ti in range(2):
        for jp in range(2):
            A(f"buffer_store_dwordx4 {v(vX + 8 * ti + 4 * jp, 4)}, v{vO if ti == 0 else vtmp}, s[{S_OUT}:{S_OUT+3}], 0 offen offset:{64 * jp}")
    T.now()
    if timing: A("s_waitcnt vmcnt(0)")
    T.now()
    T.dump(48, 49, WS_TIME + tslot * TSLOT, 28, 0)
    A.label(f"L_end_{name}")
    A("s_endpgm")
    lds = max(4 * WRING, LDS_EX + 98304)
    return A.text(), lds

if __name__ == "__main__":
    import sys
    for tag, kw in (("n", dict(mfma=False)), ("na", dict(mfma=False, lw=False)), ("nw", dict(mfma=False, la=False)),
      ("n1", dict(mfma=False, xmap=1)), ("na1", dict(mfma=False, lw=False, xmap=1)), ("nw1", dict(mfma=False, la=False, xmap=1)),
      ("n2", dict(mfma=False, xmap=2)), ("na2", dict(mfma=False, lw=False, xmap=2)), ("nw2", dict(mfma=False, la=False, xmap=2)),
      ("n3", dict(mfma=False, xmap=3)), ("na3", dict(mfma=False, lw=False, xmap=3)), ("nw3", dict(mfma=False, la=False, xmap=3)),
      ):
        name = f"k2{tag}_kernel"
        body, lds = gen_k2(name, timing=True, **kw)
        txt = f"; @launch kernel={name} grid=(256,1,1) block=(256,1,1) lds={lds}\n" + TARGET + kernel_header(name) + body + kernel_desc(name)
        open(f"k2_{tag}.s", "w").write(txt)
```

```python
from asmlib import *
from layout import *
from k2 import srd

def gen_k2b(name, timing=False, tslot=2, PA=2, PW=3, mfma=True, ld_act=""):
    A = Asm()
    NST = 18; NS = PW + 1; RA = PA + 1
    assert NS <= 4
    def acc(i, j): return 128 + (j * 4 + i) * 4
    def abuf(st, kk, i): return 256 + 32 * (st % RA) + 16 * kk + 4 * i
    def bbuf(n, kk): return 256 + 160 + 8 * (n % 4) + 4 * kk
    vA = [2, 3, 4, 5]; vW = [6, 7, 8, 9]; vT = list(range(10, 18)); vL = 18; vO = 19; vX = 20
    S_ACT, S_WO, S_W2, S_X, S_OUT, S_PART, S_FL = 4, 8, 12, 16, 20, 24, 52
    sWv, sM, sC, sQ, sA, sW, sL = 28, 29, 30, 31, 32, 33, 34
    T = Stamps(A, timing, 126, 127)
    A(f"s_cmp_ge_u32 s2, 256\ns_cbranch_scc1 L_end_{name}")
    T.take()
    A(f"s_load_dwordx2 s[40:41], s[0:1], {ARG_X}\ns_load_dwordx2 s[42:43], s[0:1], {ARG_WO}")
    A(f"s_load_dwordx4 s[44:47], s[0:1], {ARG_W2}\ns_load_dwordx2 s[48:49], s[0:1], {ARG_WS}")
    A(f"v_lshrrev_b32 v1, 6, v0\nv_and_b32 v0, 63, v0\nv_readfirstlane_b32 s{sWv}, v1")
    A(f"s_and_b32 s35, s2, 7\ns_lshr_b32 s36, s2, 3\ns_lshr_b32 s{sQ}, s35, 1\ns_and_b32 s35, s35, 1\ns_lshl_b32 s35, s35, 2")
    A(f"s_lshr_b32 s{sM}, s36, 3\ns_add_u32 s{sM}, s{sM}, s35\ns_and_b32 s{sC}, s36, 7")
    A(f"v_lshlrev_b32 v{vL}, 4, v0")
    for i in range(4):
        A(f"s_add_u32 s35, s{sQ}, {i}\ns_and_b32 s35, s35, 3\ns_lshl_b32 s35, s35, 10\nv_add_u32 v{vA[i]}, s35, v{vL}")
    A(f"s_lshl_b32 s35, s{sC}, 8\ns_lshl_b32 s36, s{sWv}, 15\ns_add_u32 s35, s35, s36")
    A("v_lshrrev_b32 v36, 4, v0\nv_and_b32 v37, 15, v0")
    for i in range(4):
        A(f"v_add_u32 v38, {4 * (i & 1)}, v36\nv_lshlrev_b32 v38, 1, v38\nv_xor_b32 v38, v38, v37\nv_lshlrev_b32 v38, 4, v38")
        A(f"v_lshl_add_u32 v38, v36, 11, v38\nv_add_u32 v38, s35, v38\nv_add_u32 v{vW[i]}, {i * (4 * 2048 - 1024)}, v38")
    A("v_lshrrev_b32 v36, 2, v0\nv_and_b32 v37, 7, v36\nv_lshlrev_b32 v37, 5, v37\nv_lshl_add_u32 v37, v36, 8, v37")
    A("v_and_b32 v38, 3, v0\nv_lshl_add_u32 v37, v38, 3, v37")
    for j in range(8):
        A(f"v_xor_b32 v{vT[j]}, {j << 5}, v37")
    A("s_waitcnt lgkmcnt(0)")
    T.init(); T.commit()
    srd(A, S_ACT, 48, 49, ACT_BYTES, WS_ACT)
    srd(A, S_W2, 44, 45, 3584 * 2048)
    srd(A, S_WO, 42, 43, 1024 * 2048)
    A(f"s_lshl_b32 s37, s{sM}, 14\ns_lshl_b32 s36, s{sWv}, 12\ns_add_u32 s37, s37, s36")
    A(f"s_mul_i32 s{sA}, s{sQ}, {28 * 131072}\ns_add_u32 s{sA}, s{sA}, {32 * 131072}\ns_add_u32 s{sA}, s{sA}, s37")
    A(f"s_lshl_b32 s38, s{sQ}, 20\ns_add_u32 s38, s38, s37")
    A(f"s_mul_i32 s{sW}, s{sQ}, {896 * 2048}\ns_lshl_b32 s39, s{sQ}, 19")
    A(f"s_lshl_b32 s{sL}, s{sWv}, 12")

    def a_loads(st):
        out = []
        if st >= NST: return out
        for kk in range(2):
            for i in range(4):
                ins = f"buffer_load_dwordx4 {r(abuf(st, kk, i), 4)}, v{vA[i]}, s[{S_ACT}:{S_ACT+3}], s{sA} offen{ld_act}"
                if i == 3:
                    ins += f"\ns_mov_b32 s{sA}, s38" if (st == 13 and kk == 1) else f"\ns_add_u32 s{sA}, s{sA}, 131072"
                out.append((ins, ("a", st)))
        return out
    def dma(st):
        out = []
        if st >= NST: return out
        sr = S_W2 if st < 14 else S_WO
        for i in range(4):
            ins = f"buffer_load_dwordx4 v{vW[i]}, s[{sr}:{sr+3}], s{sW} offen offset:{1024 * i} lds"
            if i == 0: ins = f"s_add_u32 m0, s{sL}, {(st % NS) * 16384}\n" + ins
            if i == 3: ins += f"\ns_mov_b32 s{sW}, s39" if st == 13 else f"\ns_add_u32 s{sW}, s{sW}, {64 * 2048}"
            out.append((ins, ("w", st)))
        return out
    def treads(n):
        st, j = divmod(n, 8)
        if st >= NST: return []
        return [(f"ds_read_b64_tr_b16 {r(bbuf(n, kk) + 2 * t, 2)}, v{vT[j]} offset:{(st % NS) * 16384 + (32 * kk + 16 * t) * 256}", None)
                for kk in range(2) for t in range(2)]
    issued = []
    def emit(x):
        A(x[0])
        if x[1] is not None: issued.append(x[1])
    def younger(tag):
        last = max(i for i, t in enumerate(issued) if t == tag)
        return len(issued) - 1 - last
    order = dma(0) + a_loads(0)
    for st in range(1, max(PA, PW)):
        if st < PW: order += dma(st)
        if st < PA: order += a_loads(st)
    for x in order: emit(x)
    srd(A, S_X, 40, 41, 2048 * 2048)
    srd(A, S_OUT, 46, 47, 2048 * 2048)
    srd(A, S_PART, 48, 49, PART_BYTES, WS_PART)
    srd(A, S_FL, 48, 49, FLAG_BYTES, WS_FLAG)
    A("v_and_b32 v36, 15, v0\nv_lshrrev_b32 v37, 4, v0\nv_and_b32 v38, 1, v37\nv_lshlrev_b32 v38, 5, v38\nv_lshrrev_b32 v37, 1, v37")
    A("v_lshl_add_u32 v38, v37, 4, v38\nv_lshl_add_u32 v38, v36, 11, v38")
    A(f"s_lshl_b32 s35, s{sM}, 19\ns_lshl_b32 s36, s{sWv}, 17\ns_add_u32 s35, s35, s36\ns_lshl_b32 s36, s{sQ}, 15\ns_add_u32 s35, s35, s36")
    A(f"s_lshl_b32 s36, s{sC}, 8\ns_add_u32 s35, s35, s36\nv_add_u32 v{vO}, s35, v38")
    T.now()
    A(f"s_waitcnt vmcnt({younger(('w', 0))})\ns_barrier")
    for n in range(3):
        for x in treads(n): emit(x)
    for st in range(NST):
        vm = a_loads(st + PA) + dma(st + PW)
        if st == NST - 3:
            vm += [(f"buffer_load_dwordx4 {v(vX + 4 * jp, 4)}, v{vO}, s[{S_X}:{S_X+3}], 0 offen offset:{64 * jp}", ("x", 0)) for jp in range(4)]
        last = st == NST - 1
        k_vm = 0
        for j in range(8):
            n = st * 8 + j
            if j == 0:
                A(f"s_waitcnt vmcnt({younger(('a', st))}) lgkmcnt(8)")
                if st % 2 == 0 and st: T.commit()
            elif j == 5:
                if not last: A(f"s_waitcnt vmcnt({younger(('w', st + 1))}) lgkmcnt(0)\ns_barrier")
                else: A("s_waitcnt lgkmcnt(0)")
            elif j < 5: A("s_waitcnt lgkmcnt(8)")
            if j == 4 and st % 2 == 1 and not last: T.take()
            fill = treads(n + 3)
            want_vm = (len(vm) * (j + 1) + 7) // 8
            fill = fill + vm[k_vm:want_vm]; k_vm = want_vm
            ms = []
            order = range(4) if j % 2 == 0 else reversed(range(4))
            for q, i in enumerate(order):
                for z, kk in enumerate((0, 1) if q % 2 == 0 else (1, 0)):
                    c = v(acc(i, j), 4)
                    cin = "0" if (st == 0 and z == 0) else c
                    ms.append(f"v_mfma_f32_16x16x32_bf16 {c}, {r(bbuf(n, kk), 4)}, {r(abuf(st, kk, i), 4)}, {cin}")
            k = 0
            for q, m in enumerate(ms):
                if mfma: A(m)
                want = min(len(fill), (len(fill) * (q + 1) + 6) // 7)
                while k < want:
                    emit(fill[k]); k += 1
    T.now()
    for i in range(1, 4):
        A(f"s_add_u32 s35, s{sQ}, {i}\ns_and_b32 s35, s35, 3\ns_lshl_b32 s35, s35, 1\ns_and_b32 s36, s2, 0xfffffff9\ns_or_b32 s35, s35, s36")
        A(f"s_mul_i32 s{56 + i}, s35, 49152\ns_add_u32 s{56 + i}, s{56 + i}, {(i - 1) * 16384}\ns_add_u32 s{56 + i}, s{56 + i}, s{sL}")
        A(f"s_lshl_b32 s{60 + i}, s35, 7\ns_add_u32 s{60 + i}, s{60 + i}, {FLAG2_OFF + 4 * (i - 1)}\ns_lshl_b32 s36, s{sWv}, 4\ns_add_u32 s{60 + i}, s{60 + i}, s36")
    for i in range(1, 4):
        for jp in range(4):
            a0, a1 = acc(i, 2 * jp), acc(i, 2 * jp + 1)
            A(f"v_cvt_pk_bf16_f32 v{a0}, v{a0}, v{a0+1}\nv_cvt_pk_bf16_f32 v{a0+1}, v{a0+2}, v{a0+3}")
            A(f"v_cvt_pk_bf16_f32 v{a0+2}, v{a1}, v{a1+1}\nv_cvt_pk_bf16_f32 v{a0+3}, v{a1+2}, v{a1+3}")
            A(f"buffer_store_dwordx4 {v(a0, 4)}, v{vL}, s[{S_PART}:{S_PART+3}], s{56 + i} offen offset:{1024 * jp} sc1")
    A("s_waitcnt vmcnt(12)")
    for jp in range(4):
        b = vX + 4 * jp
        A(f"v_permlane16_swap_b32 v{b}, v{b+2}\nv_permlane16_swap_b32 v{b+1}, v{b+3}")
    def add_bf16(src):
        for jp in range(4):
            for hf in range(2):
                a0 = acc(0, 2 * jp + hf); s0 = src + 4 * jp + 2 * hf
                A(f"v_lshlrev_b32 v36, 16, v{s0}\nv_and_b32 v37, 0xffff0000, v{s0}\nv_lshlrev_b32 v38, 16, v{s0+1}\nv_and_b32 v39, 0xffff0000, v{s0+1}")
                A(f"v_pk_add_f32 {v(a0, 2)}, {v(a0, 2)}, v[36:37]\nv_pk_add_f32 {v(a0+2, 2)}, {v(a0+2, 2)}, v[38:39]")
    add_bf16(vX)
    A("v_mov_b32 v40, 0\nv_mov_b32 v41, 1\ns_mov_b64 exec, 1")
    for i in range(1, 4):
        A(f"s_waitcnt vmcnt({8 - 4 * (i - 1) + (i - 1)})")
        A(f"buffer_store_dword v41, v40, s[{S_FL}:{S_FL+3}], s{60 + i} offen sc1")
    A("s_mov_b64 exec, -1")
    T.now()
    A(f"s_lshl_b32 s60, s2, 7\ns_add_u32 s60, s60, {FLAG2_OFF}\ns_lshl_b32 s36, s{sWv}, 4\ns_add_u32 s60, s60, s36")
    A(f"s_mul_i32 s56, s2, 49152\ns_add_u32 s56, s56, s{sL}\ns_add_u32 s57, s56, 16384\ns_add_u32 s58, s56, 32768")
    A.label(f"L_poll_{name}")
    A(f"buffer_load_dwordx3 v[44:46], v40, s[{S_FL}:{S_FL+3}], s60 offen sc1\ns_waitcnt vmcnt(0)")
    A(f"v_and_b32 v44, v44, v45\nv_and_b32 v44, v44, v46\nv_readfirstlane_b32 s36, v44")
    A(f"s_cmp_eq_u32 s36, 1\ns_cbranch_scc0 L_poll_{name}")
    T.now()
    for sl in range(3):
        for jp in range(4):
            A(f"buffer_load_dwordx4 {v(48 + 16 * sl + 4 * jp, 4)}, v{vL}, s[{S_PART}:{S_PART+3}], s{56 + sl} offen offset:{1024 * jp} sc1")
    for sl in range(3):
        A(f"s_waitcnt vmcnt({8 - 4 * sl})")
        add_bf16(48 + 16 * sl)
    for jp in range(4):
        a0, a1 = acc(0, 2 * jp), acc(0, 2 * jp + 1); b = vX + 4 * jp
        A(f"v_cvt_pk_bf16_f32 v{b}, v{a0}, v{a0+1}\nv_cvt_pk_bf16_f32 v{b+1}, v{a0+2}, v{a0+3}")
        A(f"v_cvt_pk_bf16_f32 v{b+2}, v{a1}, v{a1+1}\nv_cvt_pk_bf16_f32 v{b+3}, v{a1+2}, v{a1+3}")
        A(f"v_permlane16_swap_b32 v{b}, v{b+2}\nv_permlane16_swap_b32 v{b+1}, v{b+3}")
        A(f"buffer_store_dwordx4 {v(b, 4)}, v{vO}, s[{S_OUT}:{S_OUT+3}], 0 offen offset:{64 * jp}")
    T.now()
    if timing: A("s_waitcnt vmcnt(0)")
    T.now()
    T.dump(48, 49, WS_TIME + tslot * TSLOT, sWv, 0)
    A.label(f"L_end_{name}")
    A("s_endpgm")
    return A.text(), 98304
```

```python
WS_XN   = 0
XN_BYTES = 32 * 128 * 1024
WS_ACT  = 4 << 20
ACT_BYTES = 144 * 128 * 1024
WS_KV   = 24 << 20
KV_BYTES = 8 * 32 * 32768
WS_FLAG = 32 << 20
FLAG_BYTES = 2 * 8 * 32 * 128
FLAG2_OFF = 8 * 32 * 128
WS_PART = 36 << 20
PART_BYTES = 256 * 3 * 4 * 4096
TSLOT = 1 << 19
WS_TIME = 33 << 20
ARG_X, ARG_WQKV, ARG_WO, ARG_BX, ARG_W1, ARG_W3, ARG_W2, ARG_OUT, ARG_DBG, ARG_WS = [8 * i for i in range(10)]
```

```python
from build import *
cp0 = ("gemm1_kernel", "L_end_gemm1_kernel-gemm1_kernel"); cp1 = ("gemm2_kernel", "L_end_gemm2_kernel-gemm2_kernel")
build("z_0.s")
build("z_3.s", k0kw=dict(codepf=cp0, pfsteps=3), k1kw=dict(codepf=cp1, pf=3))
build("z_2.s", k0kw=dict(codepf=cp0, pfsteps=2), k1kw=dict(codepf=cp1, pf=3))
build("z_1.s", k0kw=dict(codepf=cp0), k1kw=dict(codepf=cp1, pf=3))
build("z_4.s", k0kw=dict(codepf=cp0, pfsteps=3), k1kw=dict(codepf=cp1, pf=3, st_act=" sc1"))
```

```python
from asmlib import *
from layout import *
from k2 import srd
import hazard
def gen_enc(name, a, b, S):
    A = Asm()
    A(f"s_cmp_ge_u32 s2, 1\ns_cbranch_scc1 L_end_{name}")
    A(f"s_load_dwordx2 s[48:49], s[0:1], {ARG_WS}\ns_waitcnt lgkmcnt(0)")
    srd(A, 4, 48, 49, 4 << 20, WS_TIME)
    A("v_lshlrev_b32 v1, 9, v0")
    for q, (slot, idx, op) in enumerate((a, b)):
        for n in range(16):
            A(f"s_mov_b32 s10, {slot * TSLOT + n * 64 * 512 + idx * 4}\nbuffer_load_dword v{8 + n}, v1, s[4:7], s10 offen")
        A("s_waitcnt vmcnt(0)")
        for n in range(1, 16): A(f"v_{op}_u32 v8, v8, v{8 + n}")
        for sh in (8, 4, 2, 1):
            A(f"v_{op}_u32_dpp v8, v8, v8 row_ror:{sh} row_mask:0xf bank_mask:0xf")
        A(f"v_mov_b32 v9, v8\nv_permlane16_swap_b32 v9, v8\nv_{op}_u32 v8, v8, v9\nv_mov_b32 v9, v8\nv_permlane32_swap_b32 v9, v8\nv_{op}_u32 v8, v8, v9")
        A(f"v_readfirstlane_b32 s{20 + q}, v8")
    A(f"s_sub_u32 s22, s21, s20\ns_min_u32 s22, s22, 20000\ns_mul_i32 s22, s22, {S}")
    A("s_memrealtime s[24:25]\ns_waitcnt lgkmcnt(0)")
    A.label(f"L_spin_{name}")
    A(f"s_memrealtime s[26:27]\ns_waitcnt lgkmcnt(0)\ns_sub_u32 s26, s26, s24\ns_cmp_lt_u32 s26, s22\ns_cbranch_scc1 L_spin_{name}")
    A.label(f"L_end_{name}")
    A("s_endpgm")
    return hazard.fix(A.text())[0]
def add_enc(src, dst, a, b, S):
    txt = open(src).read()
    lines = txt.split("\n")
    idx = [i for i, l in enumerate(lines) if l.startswith("; @launch")]
    lines.insert(idx[-1] + 1, "; @launch kernel=enc_kernel grid=(1,1,1) block=(64,1,1) lds=0")
    txt = "\n".join(lines) + kernel_header("enc_kernel") + gen_enc("enc_kernel", a, b, S) + kernel_desc("enc_kernel", 32, 32)
    open(dst, "w").write(txt)
if __name__ == "__main__":
    t0 = (0, 0, "min")
    add_enc("y_3.s", "d_0.s", t0, t0, 0)
    add_enc("y_3.s", "d_1.s", t0, (1, 0, "min"), 10)
    add_enc("y_3.s", "d_2.s", t0, (1, 18, "max"), 10)
    add_enc("y_3.s", "d_3.s", t0, (1, 24, "max"), 10)
    add_enc("y_3.s", "d_4.s", t0, (2, 0, "min"), 10)
    add_enc("y_3.s", "d_5.s", t0, (2, 14, "max"), 10)
```

```python
from enc import *
t0 = (0, 0, "min")
add_enc("y_0.s", "d_0.s", t0, (0, 3, "max"), 10)
add_enc("y_0.s", "d_1.s", t0, (1, 2, "max"), 10)
add_enc("y_0.s", "d_2.s", t0, (1, 18, "max"), 10)
add_enc("y_0.s", "d_3.s", t0, (1, 24, "max"), 10)
add_enc("y_0.s", "d_4.s", t0, (2, 10, "max"), 10)
add_enc("y_0.s", "d_5.s", t0, (2, 14, "max"), 10)
```

```python
WS_XN   = 0
XN_BYTES = 32 * 128 * 1024
WS_ACT  = 4 << 20
ACT_BYTES = 144 * 128 * 1024
WS_KV   = 24 << 20
KV_BYTES = 8 * 32 * 32768
WS_FLAG = 32 << 20
FLAG3_OFF = 2 * 8 * 32 * 128
FLAG_LN = 3 * 8 * 32 * 128
FLAG_E = FLAG_LN + 4096
FLAG_BYTES = FLAG_E + 128
FLAG2_OFF = 8 * 32 * 128
WS_PART = 36 << 20
PART_BYTES = 256 * 3 * 4 * 4096
TSLOT = 1 << 19
WS_TIME = 33 << 20
ARG_X, ARG_WQKV, ARG_WO, ARG_BX, ARG_W1, ARG_W3, ARG_W2, ARG_OUT, ARG_DBG, ARG_WS = [8 * i for i in range(10)]
```

```python
from enc import *
t0 = (1, 0, "min")
add_enc("p_1.s", "d_0.s", t0, t0, 0)
add_enc("p_1.s", "d_1.s", t0, (1, 4, "max"), 10)
add_enc("p_1.s", "d_2.s", t0, (1, 5, "max"), 10)
add_enc("p_1.s", "d_3.s", t0, (1, 6, "max"), 10)
add_enc("p_1.s", "d_4.s", t0, (1, 11, "max"), 10)
add_enc("p_1.s", "d_5.s", t0, (1, 15, "max"), 10)
```

```python
import sys
from asmlib import *
import kf2, hazard, align
KN = "parallel_sum__sliding_block__glu_gated_swiglu__prompt_kernel"
def head():
    return open("parallel_sum__sliding_block__glu_gated_swiglu__prompt.s.ref").read().split("; Override launch")[0]
def build2(path, single=False, hd="", al=True, mod=kf2, **kw):
    n = KN if single else "main_kernel"
    b, l = mod.gen(n, **kw)
    b, added = hazard.fix(b)
    hazard.check_loop(b, f"L_loop_{n}")
    if al: b, st = align.fix(b, always=(al == 2))
    txt = hd + f"; @launch {'' if single else 'kernel=' + n + ' '}grid=(256,1,1) block=(256,1,1) lds={l}\n" + TARGET + kernel_header(n) + b + kernel_desc(n, 512, 256)
    open(path, "w").write(txt)
```

```python
from asmlib import *
from layout import *
from sched import Sched, interleave
import hazard
import struct
def f2u(x): return struct.unpack("<I", struct.pack("<f", x))[0]

STAGE = 40960; G_OFF = 12288; U_OFF = 26624
ONES = 98048; KV_K = 98304; KV_V = 131072; LNB = 3 * STAGE
LDS_BYTES = 163840
WS_SPAN = WS_PART + PART_BYTES
OOB = 0x7ffffff0
MF16 = "v_mfma_f32_16x16x32_bf16"
def lines(txt): return [l.strip() for l in txt.split("\n") if l.strip()]

def gen(name, timing=0, tslot=1, pf=3, pfpre=2, merge=2, rsplit=3, kvgap=8, hpace=1, hflag=1, exact=True, dbg="", fa=2, pa=0, b2late=0, ppos=4, pchk=6, kvfirst=False):
    A = Asm()
    T = Stamps(A, timing > 0, 18, 19)
    fine = timing >= 2; steps_t = timing >= 3
    vQ = [2, 3, 4]; vG = [5, 6, 7, 8, 9, 10, 11]; vL = 12; vTq = [13, 14]; vTg = 15; vP = 17
    def acc(j, i):
        n = j * 4 + i
        return 20 + 4 * n if n < 59 else 256 + 96 + 4 * (n - 59)
    def abuf(p, kk, i): return 256 + 32 * p + 16 * kk + 4 * i
    def bbuf(j, kk): return 256 + 64 + 8 * (j % 4) + 4 * kk
    WS, QKV, GU, X, PF, W2, WO, OUT, CODE = [f"s[{b}:{b+3}]" for b in (4, 8, 12, 16, 20, 24, 28, 32, 36)]
    sW, sH, sM, sJ, sQd, sC = 40, 41, 42, 43, 44, 45
    sA, sQ, sG, sLq, sLg, sSt, sRd, sCnt, sRs, cNeg, cPos, sP, sPs = range(46, 59)
    t0, t1, t2, t3, t4 = 59, 60, 61, 62, 63
    sN = 64
    sW4, sKVo, sKVv, sFkv, sHo, sH3, sOo, sA2, sAo, sW2, sWo, sFh, sFhr, sLNq, sE = range(66, 81)
    sMix = 81; sTW = 85; sPd = 86; sFd = 89; sFo = 97; sPo = 98; sWoP = 101; sCoP = 3
    park = {}
    def parkv(nm, src):
        park[nm] = 180 + len(park)
        A(f"v_accvgpr_write_b32 a{park[nm]}, v{src}")
    def unpark(nm, dst): return f"v_accvgpr_read_b32 v{dst}, a{park[nm]}"

    A(f"s_cmp_ge_u32 s2, 256\ns_cbranch_scc1 L_end_{name}")
    T.take()
    A(f"s_load_dwordx2 s[16:17], s[0:1], {ARG_X}\ns_load_dwordx2 s[4:5], s[0:1], {ARG_WS}\ns_load_dwordx2 s[8:9], s[0:1], {ARG_WQKV}")
    A(f"s_load_dwordx4 s[60:63], s[0:1], {ARG_W1}\ns_load_dwordx4 s[24:27], s[0:1], {ARG_W2}\ns_load_dwordx2 s[28:29], s[0:1], {ARG_WO}")
    A(f"s_getpc_b64 s[36:37]")
    A.label(f"L_pc0_{name}")
    A(f"s_mov_b32 s38, L_end_{name}-L_pc0_{name}\ns_mov_b32 s39, 0x20000\ns_lshr_b32 s{sJ}, s2, 3\ns_lshl_b32 s3, s{sJ}, 11")
    A(f"v_lshrrev_b32 v1, 4, v0\nv_lshlrev_b32 v1, 7, v1\nbuffer_load_dword v16, v1, {CODE}, s3 offen")
    A(f"s_bfe_u32 s{sQd}, s2, 0x20001\ns_and_b32 s{t0}, s2, 1\ns_lshl_b32 s{t0}, s{t0}, 2")
    A(f"s_lshr_b32 s{sM}, s2, 6\ns_add_u32 s{sM}, s{sM}, s{t0}\ns_and_b32 s{sC}, s{sJ}, 7\ns_lshl_b32 s{sH}, s{sQd}, 3\ns_add_u32 s{sH}, s{sH}, s{sC}")
    A(f"v_lshrrev_b32 v1, 6, v0\nv_and_b32 v0, 63, v0\nv_lshlrev_b32 v{vL}, 4, v0")
    A(f"s_lshl_b32 s{sKVo}, s{sM}, 5\ns_add_u32 s{sKVo}, s{sKVo}, s{sH}\ns_lshl_b32 s{t0}, s{sKVo}, 14\nv_lshl_add_u32 v20, v1, 12, v{vL}")
    A(f"v_readfirstlane_b32 s{sW}, v1\ns_mov_b32 s18, {2048 * 2048}\ns_mov_b32 s19, 0x20000\ns_waitcnt lgkmcnt(0)")
    for q in range(4): A(f"buffer_load_dwordx4 {v(24 + 4 * q, 4)}, v20, {X}, s{t0} offen offset:{1024 * q}")
    A(f"s_add_u32 s0, s4, {WS_FLAG + FLAG_E}\ns_addc_u32 s1, s5, 0\ns_load_dwordx2 s[{sN}:{sN+1}], s[0:1], 0")
    T.init(); T.commit()
    A(f"s_mov_b32 s6, {WS_SPAN}\ns_mov_b32 s7, 0x20000\ns_mov_b32 s10, {1024 * 6144}\ns_mov_b32 s11, 0x20000")
    A(f"s_cmp_lt_u32 s{sW}, 2\ns_cselect_b32 s12, s60, s62\ns_cselect_b32 s13, s61, s63\ns_mov_b32 s14, {1024 * 7168}\ns_mov_b32 s15, 0x20000")
    A(f"s_mov_b32 s32, s26\ns_mov_b32 s33, s27\ns_mov_b32 s34, {2048 * 2048}\ns_mov_b32 s35, 0x20000")
    A(f"s_mov_b32 s26, {3584 * 2048}\ns_mov_b32 s27, 0x20000\ns_mov_b32 s30, {1024 * 2048}\ns_mov_b32 s31, 0x20000")
    A(f"s_mul_i32 s{t0}, s{sQd}, 1792\ns_mul_i32 s{t1}, s{sJ}, {2 * 7168}\ns_add_u32 s{sP}, s{t0}, s{t1}")
    A(f"s_lshl_b32 s{t0}, s{sQd}, 9\ns_mul_i32 s{t1}, s{sJ}, {2 * 6144}\ns_add_u32 s{t0}, s{t0}, s{t1}\ns_mov_b32 s{t3}, 7168")
    A(f"s_cmp_eq_u32 s{sW}, 1\ns_cselect_b32 s20, s8, s12\ns_cselect_b32 s21, s9, s13\ns_cselect_b32 s22, s10, s14\ns_cselect_b32 s{sP}, s{t0}, s{sP}")
    A(f"s_cselect_b32 s{t3}, 6144, s{t3}\ns_cselect_b32 s{t4}, 12, 14\ns_cselect_b32 s{t2}, 1536, 0\ns_lshl_b32 s{sPs}, s{t3}, 6")
    A(f"s_mul_i32 s{t0}, s{sQd}, {896 * 2048}\ns_mul_i32 s{t1}, s{sJ}, {28 * 2048}\ns_add_u32 s{t0}, s{t0}, s{t1}")
    A(f"s_cmp_eq_u32 s{sW}, 3\ns_cselect_b32 s20, s24, s20\ns_cselect_b32 s21, s25, s21\ns_cselect_b32 s22, s26, s22\ns_mov_b32 s23, 0x20000")
    A(f"s_cselect_b32 s{t3}, 2048, s{t3}\ns_cselect_b32 s{t4}, 16, s{t4}\ns_cselect_b32 s{sPs}, 4096, s{sPs}")
    A(f"s_cselect_b32 s{sA}, {OOB}, s{sP}\ns_cselect_b32 s{sQ}, 0, s{sPs}\ns_cselect_b32 s{sP}, s{t0}, s{sP}\ns_cselect_b32 s{t1}, 0, {pf}")
    A(f"v_lshrrev_b32 v20, 5, v0\nv_mul_u32_u24 v20, s{t3}, v20\nv_and_b32 v1, 31, v0\nv_lshl_add_u32 v20, v1, 7, v20")
    A(f"v_lshrrev_b32 v21, 2, v1\nv_mul_u32_u24 v21, s{t2}, v21\nv_add_u32 v20, v20, v21")
    A(f"v_cmp_gt_u32 vcc, s{t4}, v1\nv_mov_b32 v21, {OOB}\ns_mul_i32 s{t1}, s{t1}, s{sPs}\ns_add_u32 s{sP}, s{sP}, s{t1}\nv_cndmask_b32 v{vP}, v21, v20, vcc")
    A(f"s_mov_b32 s{sAo}, s{sA}\ns_mov_b32 s{sWo}, s{sQ}")
    pfe = [f"buffer_load_dword v16, v{vP}, {PF}, s{sAo} offen\ns_add_u32 s{sAo}, s{sAo}, s{sWo}"] * pf
    for x in pfe[:pfpre]: A(x)
    A(f"s_lshl_b32 s{t0}, s2, 7\ns_lshl_b32 s{t1}, s{sW}, 15\ns_add_u32 s{t0}, s{t0}, s{t1}\ns_add_u32 s{t0}, s{t0}, {WS_FLAG}\ns_cmp_eq_u32 s{sW}, 3\ns_cselect_b32 s{t0}, {OOB}, s{t0}")
    A(f"v_lshlrev_b32 v20, 2, v1\nv_mov_b32 v21, 0\nbuffer_store_dword v21, v20, {WS}, s{t0} offen sc1")
    A(f"s_lshl_b32 s{t0}, s{sW}, 1\nv_and_b32 v20, 7, v0\nv_xor_b32 v20, s{t0}, v20\nv_lshlrev_b32 v20, 4, v20\nv_lshl_add_u32 v20, v0, 7, v20\nv_add_u32 v20, {LNB}, v20\nv_xor_b32 v21, 16, v20")
    A(f"s_lshl_b32 s{t0}, s{sW}, 10\ns_add_u32 s{t0}, s{t0}, {LNB}\nv_add_u32 v22, s{t0}, v{vL}")
    A(f"v_lshrrev_b32 v1, 3, v0\nv_xor_b32 v23, v0, v1\nv_and_b32 v23, 7, v23\nv_and_b32 v1, 3, v1\nv_lshl_add_u32 v23, v1, 4, v23\nv_lshlrev_b32 v23, 4, v23")
    A(f"v_lshrrev_b32 v1, 5, v0\nv_lshl_add_u32 v23, v1, 17, v23")
    A(f"s_lshl_b32 s{sG}, s{sW}, 18\ns_lshl_b32 s{t0}, s{sM}, 14\ns_add_u32 s{sG}, s{sG}, s{t0}\ns_lshr_b32 s{t0}, s{sH}, 1\ns_lshl_b32 s{t0}, s{t0}, 10\ns_add_u32 s{sG}, s{sG}, s{t0}")
    A(f"s_and_b32 s{t0}, s{sH}, 1\ns_lshl_b32 s{t0}, s{t0}, 7\ns_add_u32 s{sG}, s{sG}, s{t0}")
    A(f"s_waitcnt vmcnt({pfpre + 1})")
    T.now()
    Xr = lambda rr, q: 40 + 16 * rr + q
    for rr in range(2):
        for q in range(8):
            A(f"v_lshlrev_b32 v{Xr(rr, 2 * q)}, 16, v{24 + 8 * rr + q}\nv_and_b32 v{Xr(rr, 2 * q + 1)}, 0xffff0000, v{24 + 8 * rr + q}")
    def tree(src, op, t):
        for q in range(4): A(op(t + 2 * q, src + 4 * q, src + 4 * q + 2))
        A(f"v_pk_add_f32 {v(t, 2)}, {v(t, 2)}, {v(t + 2, 2)}\nv_pk_add_f32 {v(t + 4, 2)}, {v(t + 4, 2)}, {v(t + 6, 2)}")
        A(f"v_pk_add_f32 {v(t, 2)}, {v(t, 2)}, {v(t + 4, 2)}\nv_add_f32 v{t}, v{t}, v{t + 1}")
    def allred(a, b):
        for sh in (8, 4, 2, 1):
            for x_ in (a, b): A(f"v_add_f32_dpp v{x_}, v{x_}, v{x_} row_ror:{sh} row_mask:0xf bank_mask:0xf")
        for sw in ("16", "32"):
            A(f"v_mov_b32 v{a + 1}, v{a}\nv_mov_b32 v{b + 1}, v{b}\nv_permlane{sw}_swap_b32 v{a + 1}, v{a}\nv_permlane{sw}_swap_b32 v{b + 1}, v{b}")
            A(f"v_add_f32 v{a}, v{a}, v{a + 1}\nv_add_f32 v{b}, v{b}, v{b + 1}")
    def rnd(x_): A(f"v_cvt_pk_bf16_f32 v{x_}, v{x_}, v{x_}\nv_and_b32 v{x_}, 0xffff0000, v{x_}")
    for rr in range(2): tree(Xr(rr, 0), lambda d, a, b: f"v_pk_add_f32 {v(d, 2)}, {v(a, 2)}, {v(b, 2)}", 72 + 8 * rr)
    allred(72, 80)
    for rr in range(2):
        A(f"v_mul_f32 v{88 + 2 * rr}, 0xba800000, v{72 + 8 * rr}\nv_mov_b32 v{89 + 2 * rr}, v{88 + 2 * rr}")
    for rr in range(2):
        for q in range(8): A(f"v_pk_add_f32 {v(96 + 16 * rr + 2 * q, 2)}, {v(Xr(rr, 2 * q), 2)}, {v(88 + 2 * rr, 2)}")
    for rr in range(2):
        for q in range(4): A(f"v_pk_mul_f32 {v(128 + 16 * rr + 4 * q, 2)}, {v(96 + 16 * rr + 4 * q, 2)}, {v(96 + 16 * rr + 4 * q, 2)}")
        tree(96 + 16 * rr, lambda d, a, b: f"v_pk_fma_f32 {v(d, 2)}, {v(b, 2)}, {v(b, 2)}, {v(a + 32, 2)}", 72 + 8 * rr)
    allred(72, 80)
    for x_ in (72, 80): A(f"v_mul_f32 v{x_}, 0x3a800000, v{x_}")
    for x_ in (72, 80): rnd(x_)
    for x_ in (72, 80): A(f"v_add_f32 v{x_}, 0x3727c5ac, v{x_}")
    for x_ in (72, 80): rnd(x_)
    for x_ in (72, 80): A(f"v_sqrt_f32 v{x_}, v{x_}")
    if exact:
        for x_ in (88, 90): rnd(x_); A(f"v_mov_b32 v{x_ + 1}, v{x_}")
    for x_ in (72, 80): rnd(x_)
    for x_ in (72, 80): A(f"v_rcp_f32 v{x_}, v{x_}")
    for rr in range(2):
        src = (lambda q: Xr(rr, 2 * q)) if exact else (lambda q: 96 + 16 * rr + 2 * q)
        if exact:
            for q in range(8): A(f"v_pk_add_f32 {v(Xr(rr, 2 * q), 2)}, {v(Xr(rr, 2 * q), 2)}, {v(88 + 2 * rr, 2)}")
        A(f"v_mov_b32 v{73 + 8 * rr}, v{72 + 8 * rr}")
        if exact:
            for q in range(8): A(f"v_cvt_pk_bf16_f32 v{24 + 8 * rr + q}, v{Xr(rr, 2 * q)}, v{Xr(rr, 2 * q + 1)}")
            for q in range(8): A(f"v_lshlrev_b32 v{Xr(rr, 2 * q)}, 16, v{24 + 8 * rr + q}\nv_and_b32 v{Xr(rr, 2 * q + 1)}, 0xffff0000, v{24 + 8 * rr + q}")
        for q in range(8): A(f"v_pk_mul_f32 {v(src(q), 2)}, {v(src(q), 2)}, {v(72 + 8 * rr, 2)}")
        for q in range(8): A(f"v_cvt_pk_bf16_f32 v{24 + 8 * rr + q}, v{src(q)}, v{src(q) + 1}")
        A(f"ds_write_b128 v{20 + rr}, {v(24 + 8 * rr, 4)}\nds_write_b128 v{20 + rr}, {v(28 + 8 * rr, 4)} offset:8192")
    A("s_waitcnt lgkmcnt(0)\ns_barrier")
    for p_ in range(4): A(f"ds_read_b128 {v(40 + 4 * p_, 4)}, v22 offset:{4096 * p_}")
    A(f"s_mul_i32 s{sN}, s{sN}, 0x9e3779b1\ns_add_u32 s{sN}, s{sN}, 0x7f4a7c15\ns_mul_i32 s{sN+1}, s{sN+1}, 0x85ebca6b\ns_add_u32 s{sN+1}, s{sN+1}, 0xc2b2ae35")
    for p_ in range(4):
        A(f"s_waitcnt lgkmcnt({3 - p_})\nbuffer_store_dwordx4 {v(40 + 4 * p_, 4)}, v23, {WS}, s{sG} offen sc1\ns_add_u32 s{sG}, s{sG}, {8 * 131072}")
    T.now()
    def swap23(dst, src):
        A(f"v_lshrrev_b32 v{dst}, 1, v{src}\nv_xor_b32 v{dst}, v{dst}, v{src}\nv_and_b32 v{dst}, 4, v{dst}\nv_mul_u32_u24 v{dst}, 3, v{dst}\nv_xor_b32 v{dst}, v{dst}, v{src}")
    A(f"s_lshl_b32 s{t0}, s{sH}, 6\ns_mul_i32 s{t1}, s{sW}, {16 * 6144}\ns_add_u32 s{t0}, s{t0}, s{t1}")
    for i in range(3):
        A(f"v_add_u32 v20, {64 * i}, v0\nv_mul_u32_u24 v21, 5462, v20\nv_lshrrev_b32 v21, 16, v21")
        A("v_mul_u32_u24 v22, 12, v21\nv_sub_u32 v20, v20, v22")
        A("v_lshrrev_b32 v22, 1, v21\nv_and_b32 v22, 2, v22\nv_xor_b32 v20, v20, v22")
        A("v_lshrrev_b32 v22, 2, v20\nv_lshlrev_b32 v22, 11, v22\nv_and_b32 v20, 3, v20\nv_lshl_add_u32 v20, v20, 4, v22")
        swap23(22, 21)
        A(f"v_mul_u32_u24 v22, 6144, v22\nv_add3_u32 v20, v20, v22, s{t0}\nv_subrev_u32 v{vQ[i]}, {1024 * i}, v20")
    A(f"s_mul_i32 s{t0}, s{sH}, 224\ns_and_b32 s{t1}, s{sW}, 1\ns_mul_i32 s{t1}, s{t1}, {32 * 7168}\ns_add_u32 s{t0}, s{t0}, s{t1}")
    A(f"s_and_b32 s{t1}, s{sH}, 1\ns_lshl_b32 s{t1}, s{t1}, 1")
    for i in range(7):
        A(f"v_add_u32 v20, {64 * i}, v0\nv_mul_u32_u24 v21, 4682, v20\nv_lshrrev_b32 v21, 16, v21")
        A(f"v_mul_u32_u24 v22, 14, v21\nv_sub_u32 v20, v20, v22\nv_add_u32 v20, s{t1}, v20")
        A("v_subrev_u32 v22, 14, v20\nv_min_u32 v20, v20, v22\nv_lshlrev_b32 v20, 4, v20")
        swap23(22, 21)
        A(f"v_mul_u32_u24 v22, 7168, v22\nv_add3_u32 v20, v20, v22, s{t0}\nv_subrev_u32 v{vG[i]}, {1024 * (i & 3)}, v20")
    A(f"s_lshl_b32 s{sW4}, s{sW}, 12\ns_lshl_b32 s{sA}, s{sM}, 14\ns_add_u32 s{sA}, s{sA}, s{sW4}")
    A(f"s_mov_b32 s{sQ}, 0\ns_mov_b32 s{sG}, 0\ns_mov_b32 s{sSt}, 0\ns_mov_b32 s{sRs}, 0\ns_mov_b32 s{cNeg}, {(-2 * STAGE) & 0xffffffff}\ns_mov_b32 s{cPos}, {STAGE}")
    A(f"s_mul_i32 s{sLq}, s{sW}, 3072\ns_mul_i32 s{sLg}, s{sW}, 7168\ns_add_u32 s{sLg}, s{sLg}, {G_OFF}")
    A(f"s_lshl_b32 s{t0}, s{sM}, 2\ns_add_u32 s{sFhr}, s{t0}, s{sQd}\ns_lshl_b32 s{t1}, s{sFhr}, 7\ns_lshl_b32 s{t2}, s{sC}, 3\ns_add_u32 s{t1}, s{t1}, s{t2}\ns_add_u32 s{t1}, s{t1}, {WS_FLAG + FLAG_LN}")
    A(f"s_cmp_eq_u32 s{sW}, 0\ns_cselect_b32 s{t1}, s{t1}, {OOB}")
    A(f"s_add_u32 s{t0}, s{t0}, s{sW}\ns_lshl_b32 s{t0}, s{t0}, 7\ns_add_u32 s{sCnt}, s{t0}, {WS_FLAG + FLAG_LN}")
    A(f"v_mov_b32 v24, s{sN}\nv_mov_b32 v25, s{sN+1}\nv_mov_b32 v22, 0\nv_and_b32 v23, 7, v0\nv_lshlrev_b32 v23, 3, v23")
    A(f"s_waitcnt vmcnt(0)\ns_barrier\ns_mov_b64 exec, 1\nbuffer_store_dwordx2 v[24:25], v22, {WS}, s{t1} offen sc1\ns_mov_b64 exec, -1")
    T.now()

    def a_loads(p):
        out = []
        for kk in range(2):
            for i in range(4):
                ins = f"buffer_load_dwordx4 {r(abuf(p, kk, i), 4)}, v{vL}, {WS}, s{sA} offen offset:{1024 * i} sc1"
                if i == 3: ins += f"\ns_add_u32 s{sA}, s{sA}, 131072"
                out.append(ins)
        return out
    def dma():
        out = []
        for i in range(3):
            ins = f"buffer_load_dwordx4 v{vQ[i]}, {QKV}, s{sQ} offen offset:{1024 * i} lds"
            if i == 0: ins = f"s_add_u32 m0, s{sLq}, s{sSt}\n" + ins
            if i == 2: ins += f"\ns_add_u32 s{sQ}, s{sQ}, {64 * 6144}\ns_add_u32 m0, s{sLg}, s{sSt}"
            out.append(ins)
        for i in range(7):
            ins = f"buffer_load_dwordx4 v{vG[i]}, {GU}, s{sG} offen offset:{1024 * (i & 3)} lds"
            if i == 3: ins += f"\ns_add_u32 m0, m0, 4096"
            if i == 6: ins += (f"\ns_add_u32 s{sG}, s{sG}, {64 * 7168}\ns_add_u32 s{sSt}, s{sSt}, {STAGE}\n"
                               f"s_cmp_eq_u32 s{sSt}, {3 * STAGE}\ns_cselect_b32 s{sSt}, 0, s{sSt}")
            out.append(ins)
        return out
    def treads(j):
        out = []
        for kk in range(2):
            for t in range(2):
                d = r(bbuf(j, kk) + 2 * t, 2)
                if j < 6:
                    out.append(f"ds_read_b64_tr_b16 {d}, v{vTq[j & 1]} offset:{(8 * t + 32 * kk) * 192 + 32 * (j & ~1)}")
                else:
                    base = G_OFF + 32 * (j - 6) if j < 13 else U_OFF + 32 * (j - 13)
                    out.append(f"ds_read_b64_tr_b16 {d}, v{vTg} offset:{base + (8 * t + 32 * kk) * 224}")
        return out
    def mfmas(j, p, first=False):
        out = []
        order = range(4) if j % 2 == 0 else reversed(range(4))
        for n, i in enumerate(order):
            for z, kk in enumerate((0, 1) if n % 2 == 0 else (1, 0)):
                c = r(acc(j, i), 4); w = r(bbuf(j, kk), 4); x = r(abuf(p, kk, i), 4)
                ci = "0" if first and z == 0 else c
                out.append(f"{MF16} {c}, {x}, {w}, {ci}" if j in (4, 5) else f"{MF16} {c}, {w}, {x}, {ci}")
        return out
    def pfi(): return [f"buffer_load_dword v16, v{vP}, {PF}, s{sP} offen\ns_add_u32 s{sP}, s{sP}, s{sPs}"]
    for x in dma(): A(x)
    A("v_lshrrev_b32 v20, 2, v0\nv_and_b32 v21, 7, v20\nv_and_b32 v20, 8, v20\nv_lshl_add_u32 v20, v20, 1, v21")
    A("v_and_b32 v21, 3, v0\nv_lshlrev_b32 v21, 3, v21")
    A(f"v_mul_u32_u24 v22, 224, v20\nv_add_u32 v{vTg}, v22, v21")
    A("v_mul_u32_u24 v22, 192, v20\nv_add_u32 v22, v22, v21\nv_and_b32 v21, 16, v0\nv_lshlrev_b32 v21, 1, v21")
    A(f"v_add_u32 v{vTq[0]}, v22, v21\nv_xor_b32 v21, 32, v21\nv_add_u32 v{vTq[1]}, v22, v21")
    A(f"buffer_load_dwordx2 v[26:27], v23, {WS}, s{sCnt} offen sc1")
    A(f"s_lshl_b32 s{sFkv}, s{sKVo}, 7\ns_lshl_b32 s{t0}, s{sW}, 2\ns_add_u32 s{sFkv}, s{sFkv}, s{t0}\ns_add_u32 s{sFkv}, s{sFkv}, {WS_FLAG}")
    A(f"s_lshl_b32 s{sKVo}, s{sKVo}, 15\ns_lshl_b32 s{t0}, s{sW}, 13\ns_add_u32 s{sKVo}, s{sKVo}, s{t0}\ns_add_u32 s{sKVo}, s{sKVo}, {WS_KV}\ns_add_u32 s{sKVv}, s{sKVo}, 4096")
    A(f"s_add_u32 s{t4}, s{sA}, {WS_ACT}")
    A(f"s_lshr_b32 s{sHo}, s{sH}, 1\ns_mul_i32 s{sHo}, s{sHo}, 7\ns_add_u32 s{sHo}, s{sHo}, 32\ns_and_b32 s{t0}, s{sH}, 1")
    A(f"s_add_u32 s{sH3}, s{sHo}, 3\ns_lshl_b32 s{sH3}, s{sH3}, 17\ns_add_u32 s{sH3}, s{sH3}, s{t4}\ns_lshl_b32 s{t1}, s{t0}, 9\ns_add_u32 s{sH3}, s{sH3}, s{t1}")
    A(f"s_lshl_b32 s{t1}, s{t0}, 2\ns_add_u32 s{sHo}, s{sHo}, s{t1}\ns_lshl_b32 s{sHo}, s{sHo}, 17\ns_add_u32 s{sHo}, s{sHo}, s{t4}")
    A(f"s_lshl_b32 s{sOo}, s{sH}, 17\ns_add_u32 s{sOo}, s{sOo}, s{t4}")
    A(f"s_mul_i32 s{sA2}, s{sQd}, {28 * 131072}\ns_add_u32 s{sA2}, s{sA2}, {32 * 131072}\ns_add_u32 s{sA2}, s{sA2}, s{t4}")
    A(f"s_mul_i32 s{sW2}, s{sQd}, {896 * 2048}")
    A(f"s_lshl_b32 s{sFhr}, s{sFhr}, 2\ns_add_u32 s{sFhr}, s{sFhr}, s{sW}\ns_lshl_b32 s{sFhr}, s{sFhr}, 7\ns_add_u32 s{sFhr}, s{sFhr}, {WS_FLAG + FLAG3_OFF}")
    A(f"s_lshl_b32 s{t0}, s{sC}, 2\ns_add_u32 s{sFh}, s{sFhr}, s{t0}")
    A(f"s_lshl_b32 s{sLNq}, s{sW}, 10\ns_add_u32 s{sLNq}, s{sLNq}, {WS_FLAG + FLAG_LN}")
    A(f"s_or_b32 s{t0}, s2, s{sW}\ns_mov_b32 s{sE}, {OOB}\ns_cmp_eq_u32 s{t0}, 0\ns_cselect_b32 s{sE}, {WS_FLAG + FLAG_E}, s{sE}")
    A(f"s_and_b32 s{t0}, s{sW}, 1\ns_mul_i32 s{t0}, s{t0}, {(-12 * 2048) & 0xffffffff}")
    A(f"s_cmp_lt_u32 s{sW}, 2\ns_cselect_b32 s{sMix}, s{t0}, 0\ns_cselect_b32 s{sMix+1}, 8192, 0\ns_cselect_b32 s{sMix+2}, 0, s{t0}\ns_cselect_b32 s{sMix+3}, 0, 8192")
    A(f"s_lshl_b32 s{t2}, s{sW}, 4\ns_add_u32 s{t2}, s{t2}, {WS_FLAG + FLAG2_OFF}\ns_add_u32 s{t3}, s{sW4}, {WS_PART}")
    for i in range(1, 4):
        A(f"s_add_u32 s{t0}, s{sQd}, {i}\ns_and_b32 s{t0}, s{t0}, 3\ns_lshl_b32 s{t0}, s{t0}, 1\ns_and_b32 s{t1}, s2, 0xfffffff9\ns_or_b32 s{t0}, s{t0}, s{t1}")
        A(f"s_mul_i32 s{sPd+i-1}, s{t0}, 49152\ns_add_u32 s{sPd+i-1}, s{sPd+i-1}, {(i - 1) * 16384}\ns_add_u32 s{sPd+i-1}, s{sPd+i-1}, s{t3}")
        A(f"s_lshl_b32 s{sFd+i-1}, s{t0}, 7\ns_add_u32 s{sFd+i-1}, s{sFd+i-1}, {4 * (i - 1)}\ns_add_u32 s{sFd+i-1}, s{sFd+i-1}, s{t2}")
    A(f"s_lshl_b32 s{sFo}, s2, 7\ns_add_u32 s{sFo}, s{sFo}, s{t2}")
    A(f"s_mul_i32 s{sPo}, s2, 49152\ns_add_u32 s{sPo}, s{sPo}, s{t3}\ns_add_u32 s{sPo+1}, s{sPo}, 16384\ns_add_u32 s{sPo+2}, s{sPo}, 32768")
    A(f"s_lshl_b32 s{sWoP}, s{sQd}, 19\ns_lshl_b32 s{t0}, s{sJ}, 14\ns_add_u32 s{sWoP}, s{sWoP}, s{t0}\ns_add_u32 s{sWoP}, s{sWoP}, s{sW4}")
    A(f"s_lshl_b32 s{sCoP}, s{sJ}, 2\ns_add_u32 s{sCoP}, s{sCoP}, s{sW}\ns_mul_i32 s{sCoP}, s{sCoP}, 384\ns_add_u32 s{sCoP}, s{sCoP}, L_tail_{name}-L_pc0_{name}")
    A(f"s_waitcnt vmcnt(0)\nv_cmp_ne_u64 vcc, v[26:27], v[24:25]\ns_cmp_eq_u64 vcc, 0\ns_cbranch_scc1 L_lnok_{name}")
    A.label(f"L_lnp_{name}")
    A(f"buffer_load_dwordx2 v[26:27], v23, {WS}, s{sCnt} offen sc1\ns_waitcnt vmcnt(0)")
    A(f"v_cmp_ne_u64 vcc, v[26:27], v[24:25]\ns_cmp_eq_u64 vcc, 0\ns_cbranch_scc0 L_lnp_{name}")
    A.label(f"L_lnok_{name}")
    T.now()
    for x in a_loads(0): A(x)
    for x in pfe[pfpre:]: A(x)
    A("s_barrier")
    for j in range(3):
        for x in treads(j): A(x)
    A(f"s_lshl_b32 s{sAo}, s{sQd}, 20\ns_add_u32 s{sAo}, s{sAo}, s{t4}\ns_lshl_b32 s{sWo}, s{sQd}, 19")
    A(f"s_lshl_b32 s{t0}, s{sC}, 8\ns_lshl_b32 s{t1}, s{sW}, 15\ns_add_u32 s{t0}, s{t0}, s{t1}\nv_lshrrev_b32 v20, 4, v0\nv_and_b32 v21, 15, v0")
    for i in range(2):
        A(f"v_add_u32 v22, {4 * i}, v20\nv_lshlrev_b32 v22, 1, v22\nv_xor_b32 v22, v22, v21\nv_lshlrev_b32 v22, 4, v22")
        A(f"v_lshl_add_u32 v22, v20, 11, v22\nv_add_u32 v22, s{t0}, v22\nv_add_u32 v23, {i * (4 * 2048 - 1024)}, v22\nv_add_u32 v22, {(i + 2) * (4 * 2048 - 1024)}, v22")
        parkv(f"W{i}", 23); parkv(f"W{i + 2}", 22)
    for i in range(4):
        A(f"s_add_u32 s{t0}, s{sQd}, {i}\ns_and_b32 s{t0}, s{t0}, 3\ns_lshl_b32 s{t0}, s{t0}, 10\nv_add_u32 v22, s{t0}, v{vL}"); parkv(f"A{i}", 22)
    A(f"v_add_u32 v22, s{sW4}, v{vL}\nv_add_u32 v23, {KV_K}, v22\nv_add_u32 v22, {KV_V}, v22"); parkv("K", 23); parkv("V", 22)
    A(f"s_lshl_b32 s{t0}, s{sW}, 5\ns_add_u32 s{t0}, s{t0}, {ONES}\nv_mov_b32 v22, s{t0}"); parkv("onesr", 22)
    A(f"s_cmp_eq_u32 s{sM}, 0\ns_cselect_b32 s{t0}, 32, 0\nv_mov_b32 v22, 0x3f803f80\nv_cmp_le_u32 vcc, s{t0}, v0\nv_lshlrev_b32 v23, 2, v0\nv_add_u32 v23, {ONES}, v23\nv_cndmask_b32 v22, 0, v22, vcc")
    parkv("onesd", 22); parkv("onesw", 23)
    A(f"v_lshlrev_b32 v22, 2, v20\nv_mov_b32 v24, {f2u(-1e30)}")
    for q in range(4):
        A(f"v_add_u32 v23, {q}, v22\nv_cmp_gt_u32 vcc, v23, v21\nv_cndmask_b32 v25, v24, 0, vcc\nv_cndmask_b32 v26, 0, v24, vcc")
        parkv(f"MF{q}", 25); parkv(f"ML{q}", 26)
    A("v_lshrrev_b32 v22, 2, v0\nv_and_b32 v23, 7, v22\nv_lshlrev_b32 v23, 5, v23\nv_lshl_add_u32 v23, v22, 8, v23\nv_and_b32 v22, 3, v0\nv_lshl_add_u32 v23, v22, 3, v23")
    parkv("T", 23)
    A("v_and_b32 v22, 1, v20\nv_lshlrev_b32 v23, 5, v22\nv_lshrrev_b32 v24, 1, v20\nv_lshl_add_u32 v23, v24, 4, v23\nv_lshl_add_u32 v23, v21, 11, v23")
    A(f"s_lshl_b32 s{t0}, s{sM}, 19\ns_lshl_b32 s{t1}, s{sW}, 17\ns_add_u32 s{t0}, s{t0}, s{t1}\ns_lshl_b32 s{t1}, s{sQd}, 15\ns_add_u32 s{t0}, s{t0}, s{t1}")
    A(f"s_lshl_b32 s{t1}, s{sC}, 8\ns_add_u32 s{t0}, s{t0}, s{t1}\nv_add_u32 v23, s{t0}, v23"); parkv("O", 23)
    A("v_lshlrev_b32 v23, 4, v21\nv_lshl_add_u32 v23, v22, 10, v23\nv_lshl_add_u32 v23, v24, 8, v23"); parkv("H3", 23)
    A("v_and_b32 v22, 7, v0\nv_lshlrev_b32 v23, 2, v22"); parkv("P8", 23)
    A("v_lshrrev_b32 v23, 3, v0\nv_lshlrev_b32 v23, 7, v23\nv_lshl_add_u32 v23, v22, 3, v23"); parkv("LNq", 23)
    A("v_and_b32 v23, 31, v0\nv_lshlrev_b32 v23, 7, v23"); parkv("WoP", 23)
    A("v_min_u32 v23, 2, v0\nv_lshlrev_b32 v23, 7, v23"); parkv("CoP", 23)

    def step(p, vm, vm_start, vm_beta, first=False, do_pf=False, early=[], extra=[], st=False):
        slots = [[] for _ in range(20)]
        for n, x in enumerate(vm):
            slots[min(n * 17 // max(len(vm), 17), 16)].append(x)
        for j in range(20):
            if j == 0: A(f"s_waitcnt vmcnt({vm_start}) lgkmcnt(8)")
            elif j == 17:
                A(f"s_waitcnt vmcnt({vm_beta}) lgkmcnt(0)\ns_barrier")
                if st: T.commit()
            elif j < 17: A("s_waitcnt lgkmcnt(8)")
            if j == 16 and st: T.take()
            fill = treads((j + 3) % 20) + slots[j]
            if j == 17 and do_pf: fill += pfi()
            if j == 10: fill += early
            if j == 18: fill += extra
            if j == 16:
                fill.append(f"s_add_u32 s{sRs}, s{sRs}, 1\ns_cmp_eq_u32 s{sRs}, 3\ns_cselect_b32 s{sRd}, s{cNeg}, s{cPos}\ns_cselect_b32 s{sRs}, 0, s{sRs}")
                fill.append(f"v_add_u32 v{vTq[0]}, s{sRd}, v{vTq[0]}\nv_add_u32 v{vTq[1]}, s{sRd}, v{vTq[1]}")
                fill.append(f"v_add_u32 v{vTg}, s{sRd}, v{vTg}")
            k = 0
            for n, m in enumerate(mfmas(j, p, first)):
                A(m)
                want = min(len(fill), (len(fill) * (n + 1) + 6) // 7)
                if k == want and not first:
                    if "x1m" in dbg: A("v_mul_f32 v1, v0, v12")
                    if "x2m" in dbg: A("v_mul_f32 v1, v0, v12\nv_mul_f32 v1, v12, v0")
                    if "x1e" in dbg: A("v_exp_f32 v1, v12")
                elif "xall" in dbg and not first: A("v_mul_f32 v1, v0, v12")
                while k < want:
                    A(fill[k]); k += 1
    step(0, dma() + a_loads(1) + dma(), pf - pfpre, 18, first=True, do_pf=True, early=[f"s_mov_b32 s{sCnt}, 6"], st=True)
    A.label(f"L_loop_{name}")
    step(1, a_loads(0) + dma(), 11, 19, do_pf=True, st=steps_t)
    step(0, a_loads(1) + dma(), 11, 19, do_pf=True, st=steps_t)
    A(f"s_sub_u32 s{sCnt}, s{sCnt}, 1\ns_cmp_lg_u32 s{sCnt}, 0\ns_cbranch_scc1 L_loop_{name}")
    step(1, a_loads(0) + dma(), 11, 19, do_pf=True, st=steps_t)
    A.label(f"L_tail_{name}")
    ex = [f"buffer_load_dword v16, v{vP}, {WO}, s{sWoP} offen",
          f"buffer_load_dword v16, v1, {CODE}, s{sCoP} offen",
          f"buffer_load_dwordx2 v[4:5], v2, {WS}, s{sLNq} offen sc1"]
    step(0, a_loads(1), 11, 9, early=[unpark("WoP", vP), unpark("CoP", 1), unpark("LNq", 2)], extra=ex, st=steps_t)

    S = Sched(A)
    rset = hazard.regs
    S.vm = [(rset(r(abuf(1, kk, i), 4)), "a15") for kk in range(2) for i in range(4)] + [({("v", 16), ("v", 4), ("v", 5)}, "pf")] * len(ex)
    S.ds = [(rset(r(bbuf(j, kk) + 2 * t, 2)), None) for j in range(3) for kk in range(2) for t in range(2)]
    def em(x):
        if isinstance(x, tuple): S(*x)
        elif callable(x): x()
        else: S(x)
    def stamp(lvl=1):
        if timing >= lvl:
            T.now(); S.ds = []
    def pack2(dst, a, b):
        return [f"v_cvt_pk_bf16_f32 v{dst}, v{a}, v{a+1}", f"v_cvt_pk_bf16_f32 v{dst+1}, v{a+2}, v{a+3}",
                f"v_cvt_pk_bf16_f32 v{dst+2}, v{b}, v{b+1}", f"v_cvt_pk_bf16_f32 v{dst+3}, v{b+2}, v{b+3}"]
    vZ, vOne = 14, 17
    vA2 = [2, 3, 4, 5]; vW = [6, 7, 8, 9]; vK, vV = 10, 11; vT = list(range(36, 44)); vO = 44; vP8 = 49; vH3 = 50; vX = 100
    cL, cOne, cS = 46, 48, 50
    def flag_store(soff, off=0):
        S(f"s_mov_b64 exec, 1\nbuffer_store_dword v{vOne}, v{vZ}, {WS}, s{soff} offen offset:{off} sc1\ns_mov_b64 exec, -1", "flag")
    def spin(lab, first, reload, test):
        S(f"{first}\ns_cbranch_scc1 L_{lab}_ok_{name}")
        A.label(f"L_{lab}_{name}")
        A(f"{reload}\ns_waitcnt vmcnt(0)\n{test}\ns_cbranch_scc0 L_{lab}_{name}")
        A.label(f"L_{lab}_ok_{name}")
    sh = {}
    sh[0] = [unpark("K", vK), unpark("V", vV)] + [unpark(f"W{i}", vW[i]) for i in range(4)]
    sh[0] += lines(f"s_mov_b32 s{cL}, {f2u(-1.4426950408889634)}\ns_mov_b32 s{cL+1}, s{cL}\ns_mov_b32 s{cOne}, 1.0\ns_mov_b32 s{cOne+1}, 1.0")
    sh[0] += lines(f"s_mov_b32 s{cS}, {f2u(0.17677669529663687 * 1.4426950408889634)}\ns_mov_b32 s{cS+1}, s{cS}")
    sh[3] = [f"v_mov_b32 v{vZ}, 0", f"v_mov_b32 v{vOne}, 1", unpark("onesw", 13), f"ds_write_b32 v13, a{park['onesd']}"]
    sh[5] = []; dsw = []
    for i in range(4):
        sh[5] += pack2(acc(2, i), acc(2, i), acc(3, i))
        sh[5].append((f"buffer_store_dwordx4 {v(acc(2, i), 4)}, v{vL}, {WS}, s{sKVo} offen offset:{1024 * i} sc1", "kv"))
        dsw.append(f"ds_write_b128 v{vK}, {v(acc(2, i), 4)} offset:{16384 + 1024 * i}")
    sh[7] = []
    for b in range(2):
        for dt in range(2):
            d = acc(4 + dt, 2 * b)
            sh[7] += pack2(d, d, acc(4 + dt, 2 * b + 1))
            sh[7].append((f"buffer_store_dwordx4 {v(d, 4)}, v{vL}, {WS}, s{sKVv} offen offset:{2048 * b + 1024 * dt} sc1", "kv"))
            dsw.append(f"ds_write_b128 v{vV}, {v(d, 4)} offset:{16384 + 2048 * b + 1024 * dt}")
    for i in range(4): sh[7] += pack2(acc(0, i), acc(0, i), acc(1, i))
    sh[7] += [unpark("T", 36)] + [f"v_xor_b32 v{vT[j]}, {j << 5}, v36" for j in range(1, 8)] + [unpark("O", vO), unpark("P8", vP8), unpark("H3", vH3)]
    sh[7] += [f"v_mov_b32 v46, s{sN}", f"v_mov_b32 v47, s{sN+1}"]
    if "dwlate" not in dbg: sh[7] += dsw; dsw = []
    sh[17] = [unpark(f"A{i}", vA2[i]) for i in range(4)]
    shq = []; stq = []; dwq = []; cool_s = cool_d = 0
    tst = f"v_cmp_ne_u64 vcc, s[{sN}:{sN+1}], v[4:5]\ns_cmp_eq_u64 vcc, 0"
    for j in range(20):
        shq += sh.get(j, [])
        if j == 16: spin("cnt", tst, f"buffer_load_dwordx2 v[4:5], v2, {WS}, s{sLNq} offen sc1", tst)
        S.need_txt(*([r(bbuf(j, kk), 4) for kk in range(2)] + ([r(abuf(1, kk, i), 4) for kk in range(2) for i in range(4)] if j == 0 else [])))
        fill = treads(j + 3) if j + 3 < 20 else []
        for n, m in enumerate(mfmas(j, 1)):
            S(m)
            room = 2
            if n % 2 == 0 and fill: S(fill.pop(0)); room = 0
            if room == 2 and stq and cool_s <= 0:
                em(stq.pop(0)); room = 0; cool_s = kvgap
            elif room == 2 and dwq and cool_d <= 0:
                em(dwq.pop(0)); room = 0; cool_d = 2
            while shq and room > 0:
                x = shq.pop(0); txt = x[0] if isinstance(x, tuple) else x
                if txt.startswith("buffer_store"): stq.append(x)
                elif txt.startswith("ds_write"): dwq.append(x)
                else: em(x); room -= 1
            cool_s -= 1; cool_d -= 1
    for x in shq + stq + dwq + dsw: em(x)
    stamp()
    NST = 18; NS = max(4, merge + 2); RA = max(4, merge + 1)
    def acc2(i, j): return 128 + (j * 4 + i) * 4
    def abuf2(st, kk, i): return 256 + 32 * (st % RA) + 16 * kk + 4 * i
    def bbuf2(n, kk): return 256 + 200 + 8 * (n % 4) + 4 * kk
    def a2(st):
        out = []
        if st >= NST: return out
        for kk in range(2):
            for i in range(4):
                ins = f"buffer_load_dwordx4 {r(abuf2(st, kk, i), 4)}, v{vA2[i]}, {WS}, s{sA2} offen sc1"
                if i == 3: ins += f"\ns_mov_b32 s{sA2}, s{sAo}" if (st == 13 and kk == 1) else f"\ns_add_u32 s{sA2}, s{sA2}, 131072"
                out.append((ins, ("a", st)))
        return out
    def dma2(st):
        out = []
        if st >= NST: return out
        sr = W2 if st < 14 else WO
        mixed = {1: sMix + 2, 5: sMix, 8: sMix + 2, 12: sMix}.get(st)
        for i in range(4):
            ins = f"buffer_load_dwordx4 v{vW[i]}, {sr}, s{sTW if mixed else sW2} offen offset:{1024 * i} lds"
            if mixed: ins = (f"s_add_u32 s{sTW}, s{sW2}, s{mixed}\n" if i == 0 else f"s_add_u32 s{sTW}, s{sTW}, s{mixed + 1}\n") + ins
            if i == 0: ins = f"s_add_u32 m0, s{sW4}, {(st % NS) * 16384}\n" + ins
            if i == 3: ins += f"\ns_mov_b32 s{sW2}, s{sWo}" if st == 13 else f"\ns_add_u32 s{sW2}, s{sW2}, {64 * 2048}"
            out.append((ins, ("w", st)))
        return out
    S.wait_tags(ds0=True)
    S("s_barrier")
    def silu2(tiles, fill=[]):
        fill = list(fill)
        def f(n=1):
            for _ in range(n):
                if fill: em(fill.pop(0))
        for jj, i, dst, tb in tiles:
            g = acc(6 + jj, i)
            S(f"v_pk_mul_f32 {v(tb, 2)}, {v(g, 2)}, s[{cL}:{cL+1}]\nv_pk_mul_f32 {v(tb + 2, 2)}, {v(g + 2, 2)}, s[{cL}:{cL+1}]")
        f()
        for jj, i, dst, tb in tiles:
            for q in range(4): S(f"v_exp_f32 v{tb + q}, v{tb + q}")
            f()
        for jj, i, dst, tb in tiles:
            g = acc(6 + jj, i); u = acc(13 + jj, i)
            if u >= 256:
                for q in range(4): S(f"v_accvgpr_read_b32 v{tb + 4 + q}, a{u - 256 + q}")
                u = tb + 4
            S(f"v_pk_mul_f32 {v(tb + 4, 2)}, {v(g, 2)}, {v(u, 2)}\nv_pk_mul_f32 {v(tb + 6, 2)}, {v(g + 2, 2)}, {v(u + 2, 2)}")
            S(f"v_pk_add_f32 {v(tb, 2)}, {v(tb, 2)}, s[{cOne}:{cOne+1}]\nv_pk_add_f32 {v(tb + 2, 2)}, {v(tb + 2, 2)}, s[{cOne}:{cOne+1}]")
            f()
        for jj, i, dst, tb in tiles:
            for q in range(4): S(f"v_rcp_f32 v{tb + q}, v{tb + q}")
            f()
        for jj, i, dst, tb in tiles:
            S(f"v_pk_mul_f32 {v(tb + 4, 2)}, {v(tb + 4, 2)}, {v(tb, 2)}\nv_pk_mul_f32 {v(tb + 6, 2)}, {v(tb + 6, 2)}, {v(tb + 2, 2)}")
        for jj, i, dst, tb in tiles:
            S(f"v_cvt_pk_bf16_f32 v{dst}, v{tb + 4}, v{tb + 5}\nv_cvt_pk_bf16_f32 v{dst + 1}, v{tb + 6}, v{tb + 7}")
        f(len(fill))
    HL = 196
    def hreg(p, i): return acc(6 + 2 * p, i) if p < 2 else HL + 4 * i
    def hstore(p, i):
        return (f"buffer_store_dwordx4 {v(hreg(p, i), 4)}, v{vL}, {WS}, s{sHo} offen offset:{1024 * i} sc1"
                + (f"\ns_add_u32 s{sHo}, s{sHo}, 131072" if i == 3 else ""), "h")
    TB = 68
    def pair(p, i, fill=[]): silu2([(2 * p, i, hreg(p, i), TB), (2 * p + 1, i, hreg(p, i) + 2, TB + 8)], fill)
    w0 = dma2(0)
    pair(0, 0)
    S.wait_tags("kv"); flag_store(sFkv)
    S(f"s_mov_b64 exec, 1\nbuffer_store_dwordx2 v[46:47], v{vZ}, {WS}, s{sE} offen sc1\ns_mov_b64 exec, -1", "flag")
    S(f"s_lshl_b32 s{t1}, s{sW}, 2\ns_lshl_b32 s{t2}, s{sW}, 13\ns_cmp_eq_u32 s{sM}, 0\ns_cselect_b32 s{t0}, s{t1}, {32 * 128}\ns_cselect_b32 s{t2}, s{t2}, {32 * 32768}")
    S(f"s_cselect_b32 s{t3}, 0, 1024\ns_cselect_b32 s{t4}, 48, 63\ns_cselect_b32 s{sKVv}, {OOB}, s{sKVv}\ns_cselect_b32 s{t1}, 0, {32 * 32768}")
    S(f"s_sub_u32 s{sFkv}, s{sFkv}, s{t0}\ns_sub_u32 s{sKVo}, s{sKVo}, s{t2}\ns_sub_u32 s{sKVv}, s{sKVv}, s{t1}\nv_and_b32 v45, s{t4}, v0\nv_lshlrev_b32 v45, 4, v45")
    stamp(2)
    tst = f"v_readfirstlane_b32 s{t0}, v13\ns_cmp_eq_u32 s{t0}, 1"
    kvd = [(f"s_add_u32 m0, s{sW4}, {KV_K + 1024 * i}\nbuffer_load_dwordx4 v45, {WS}, s{sKVo} offen sc1 lds\ns_add_u32 s{sKVo}, s{sKVo}, s{t3}", "kvd") for i in range(4)]
    kvd += [((f"s_add_u32 m0, s{sW4}, {KV_V}\n" if i == 0 else "") + f"buffer_load_dwordx4 v{vL}, {WS}, s{sKVv} offen offset:{1024 * i} sc1 lds", "kvd") for i in range(4)]
    for z in range(1, 8):
        fill = []
        if z == ppos: S(f"buffer_load_dword v13, v{vZ}, {WS}, s{sFkv} offen sc1", "poll")
        if z == pchk:
            stamp(2)
            spin("kv", tst, f"buffer_load_dword v13, v{vZ}, {WS}, s{sFkv} offen sc1", tst)
            stamp(2)
            fill += kvd
        if not kvfirst and z in (1, 2): fill += w0[2 * z - 2: 2 * z]
        if kvfirst and z == pchk + 1: fill += w0
        if z == 7: fill += [hstore(0, 0)]
        pair(z >> 2, z & 3, fill)
    silu2([(6, 0, HL + 16, TB), (6, 1, HL + 18, TB + 8)], [hstore(0, 1)])
    silu2([(6, 2, HL + 20, TB), (6, 3, HL + 22, TB + 8)], [hstore(0, 2)])
    MFm, MLm = 220, 224
    for q in range(4): S(unpark(f"MF{q}", MFm + q)); S(unpark(f"ML{q}", MLm + q))
    S(unpark("onesr", 13))
    for z in range(2):
        b_ = HL + 16 + 4 * z
        S(f"v_permlane16_swap_b32 v{b_}, v{b_ + 2}\nv_permlane16_swap_b32 v{b_ + 1}, v{b_ + 3}")
    hq = [hstore(0, 3)] + [hstore(1, i) for i in range(4)]
    for i in range(b2late): pair(2, i, hq[i:i + 1])
    stamp(2)
    S.wait_tags("kvd", ("w", 0), ds0=True)
    S("s_barrier")
    stamp(2)
    KF = lambda n: 256 + 4 * n
    VF = lambda B, dt: 256 + 80 + 8 * B + 4 * dt
    OF = lambda B: 256 + 160 + 4 * B
    Sr = lambda qt, n: 52 + 72 * (qt & 1) + 4 * n
    Or = lambda qt, t: 256 + 232 + 12 * (qt & 1) + 4 * t
    kreads = [f"ds_read_b128 {r(KF(n), 4)}, v{vK} offset:{1024 * n}" for n in range(20)]
    vr = [[f"ds_read_b128 {r(VF(B, dt), 4)}, v{vV} offset:{2048 * B + 1024 * dt}" for dt in range(2)] for B in range(10)]
    onr = [f"ds_read_b128 {r(OF(B), 4)}, v13 offset:{16 * B}" for B in range(10)]
    early = kreads + vr[0] + vr[1] + vr[2] + vr[3] + vr[4] + vr[5]
    for i in range(b2late, 4):
        pair(2, i, hq[i:i + 1] + early[:8] + (hq[4:] if i == 3 else [])); early = early[8:]
    vreads = early + onr[:6] + [x for B in range(6, 10) for x in vr[B] + [onr[B]]]
    hlate = [hstore(2, i) for i in range(4)]
    hlate += [(f"buffer_store_dwordx4 {v(HL + 16 + 4 * z, 4)}, v{vH3}, {WS}, s{sH3} offen offset:{2048 * z} sc1", "h") for z in range(2)]
    stamp()
    def qk(qt):
        qi = qt & 1; out = []
        for n in range(qi, 17 + qi):
            c = v(MFm, 4) if n == qi else v(MLm, 4) if n == 16 + qi else "0"
            out.append(f"{MF16} {v(Sr(qt, n), 4)}, {r(KF((qt & ~1) + n), 4)}, {v(acc(0, qt), 4)}, {c}")
        return out
    def finish(qt):
        out = [f"v_accvgpr_read_b32 v236, {r(Or(qt, 2))}"]
        out += [f"v_accvgpr_read_b32 v{248 + q}, {r(Or(qt, 0) + q)}" for q in range(8)]
        out += [f"v_rcp_f32 v236, v236", "v_mov_b32 v237, v236"]
        out += [f"v_pk_mul_f32 {v(248 + 2 * q, 2)}, {v(248 + 2 * q, 2)}, v[236:237]" for q in range(4)]
        d = 240 + 4 * (qt & 1)
        out += pack2(d, 248, 252)
        out.append((f"buffer_store_dwordx4 {v(d, 4)}, v{vL}, {WS}, s{sOo} offen offset:{1024 * qt} sc1", "o"))
        return out
    def poll8(off, lab):
        tst = "v_cmp_ne_u32 vcc, 1, v48\ns_cmp_eq_u64 vcc, 0"
        spin(lab, tst, f"buffer_load_dword v48, v{vP8}, {WS}, s{sFhr} offen offset:{off} sc1", tst)
    def maxchain(qt):
        qi = qt & 1
        rs = [Sr(qt, n) + q for n in range(qi, 17 + qi) for q in range(4)]
        mx = [f"v_max3_f32 v228, v{rs[0]}, v{rs[1]}, v{rs[2]}", f"v_max3_f32 v229, v{rs[3]}, v{rs[4]}, v{rs[5]}"]
        k = 6; t = 0
        while k + 1 < len(rs):
            mm = (228, 229)[t]; t ^= 1
            mx.append(f"v_max3_f32 v{mm}, v{mm}, v{rs[k]}, v{rs[k + 1]}"); k += 2
        return mx
    q0 = qk(0); mx0 = maxchain(0)
    for n, m in enumerate(q0):
        S(m)
        if vreads: S(vreads.pop(0))
        if n >= 6: S(mx0.pop(0))
    wl = {1: dma2(1), 2: dma2(2)}
    for qt in range(4):
        qi = qt & 1; b = qt >> 1
        m0_, m1_ = 228, 229
        interleave(S, mx0 if qt == 0 else maxchain(qt), vreads if qt == 0 else [])
        if qt > 0:
            for x in finish(qt - 1): em(x)
        if qt == hflag:
            assert not hlate
            S.wait_tags("h"); flag_store(sFh)
        if qt == 3: poll8(0, "ph")
        S(f"v_max_f32 v{m0_}, v{m0_}, v{m1_}\nv_mov_b32 v{m1_}, v{m0_}\nv_permlane16_swap_b32 v{m1_}, v{m0_}")
        S(f"v_max_f32 v{m0_}, v{m0_}, v{m1_}\nv_mov_b32 v{m1_}, v{m0_}\nv_permlane32_swap_b32 v{m1_}, v{m0_}")
        S(f"v_max_f32 v{m0_}, v{m0_}, v{m1_}\nv_mul_f32 v{m0_}, s{cS}, v{m0_}\nv_sub_f32 v{m0_}, 0, v{m0_}\nv_mov_b32 v{m1_}, v{m0_}")
        nxt = qk(qt + 1) if qt < 3 else a2(0) + a2(1)
        pend = []
        for B in range(9):
            s0, s1 = Sr(qt, 2 * B), Sr(qt, 2 * B + 1)
            live = [s_ for s_, n in ((s0, 2 * B), (s1, 2 * B + 1)) if qi <= n <= 16 + qi]
            for s_ in live:
                S(f"v_pk_fma_f32 {v(s_, 2)}, {v(s_, 2)}, s[{cS}:{cS+1}], {v(m0_, 2)}\nv_pk_fma_f32 {v(s_ + 2, 2)}, {v(s_ + 2, 2)}, s[{cS}:{cS+1}], {v(m0_, 2)}")
            exs = [f"v_exp_f32 v{s_ + q}, v{s_ + q}" for s_ in live for q in range(4)]
            take = nxt[:2]; nxt = nxt[2:]
            mm = pend + take
            if len(exs) == 8: interleave(S, exs[:len(mm)], mm); [S(x) for x in exs[len(mm):]]
            else: interleave(S, exs, mm, per=2)
            if s0 in live: S(f"v_cvt_pk_bf16_f32 v{s0}, v{s0}, v{s0 + 1}\nv_cvt_pk_bf16_f32 v{s0 + 1}, v{s0 + 2}, v{s0 + 3}")
            else: S(f"v_mov_b32 v{s0}, 0\nv_mov_b32 v{s0 + 1}, 0")
            if s1 in live: S(f"v_cvt_pk_bf16_f32 v{s0 + 2}, v{s1}, v{s1 + 1}\nv_cvt_pk_bf16_f32 v{s0 + 3}, v{s1 + 2}, v{s1 + 3}")
            else: S(f"v_mov_b32 v{s0 + 2}, 0\nv_mov_b32 v{s0 + 3}, 0")
            pend = []
            for t in range(3):
                src = OF(b + B) if t == 2 else VF(b + B, t)
                c = "0" if B == 0 else r(Or(qt, t), 4)
                pend.append(f"{MF16} {r(Or(qt, t), 4)}, {r(src, 4)}, {v(s0, 4)}, {c}")
            if hlate and B % hpace == 0: em(hlate.pop(0))
            if qt in wl and B % 2 == 1: em(wl[qt].pop(0))
            if qt == 2 and B == 8: S(f"buffer_load_dword v48, v{vP8}, {WS}, s{sFhr} offen sc1", "poll")
        assert not nxt
        for x in pend: S(x)
        stamp(1 if qt == 3 else 2)
    groups = [(st, j) for st in range(NST - merge) for j in range(8)] + [(st, j) for j in range(8) for st in range(NST - merge, NST)]
    vT2 = list(range(52, 60))
    def treads2(n):
        if n >= len(groups): return []
        st, j = groups[n]
        sl = st % NS
        va, base = (vT[j], sl * 16384) if sl < 4 else (vT2[j], (sl - 4) * 16384)
        return [f"ds_read_b64_tr_b16 {r(bbuf2(n, kk) + 2 * t, 2)}, v{va} offset:{base + (32 * kk + 16 * t) * 256}"
                for kk in range(2) for t in range(2)]
    for n in range(3):
        for x in treads2(n): S(x)
    for x in finish(3): em(x)
    def send(jp):
        out = []
        for i in range(1, 4):
            a0, a1 = acc2(i, 2 * jp), acc2(i, 2 * jp + 1)
            out += pack2(a0, a0, a1)
            out.append((f"buffer_store_dwordx4 {v(a0, 4)}, v{vL}, {WS}, s{sPd + i - 1} offen offset:{1024 * jp} sc1", ("p", jp)))
        return out
    def flags(off):
        S("s_mov_b64 exec, 1")
        for i in range(3): S(f"buffer_store_dword v{vOne}, v{vZ}, {WS}, s{sFd + i} offen offset:{off} sc1", "flag")
        S("s_mov_b64 exec, -1")
    def pload(off): return f"buffer_load_dwordx3 v[24:26], v{vZ}, {WS}, s{sFo} offen offset:{off} sc1"
    NN = NST - merge
    aq = [x for st in range(2, NST) for x in a2(st)]; wq = [x for st in range(3, NST) for x in dma2(st)]
    a_cum = []; w_cum = []
    for st in range(NN):
        xs = max(0, merge - 2)
        a_cum.append(min(len(aq), 8 * (st + 1) + min(8 * xs, (8 * xs * (st + 1)) // (NN - 3))))
        w_cum.append(min(len(wq), 4 * (st + 1) + min(4 * xs, (4 * xs * st) // (NN - 4))))
    assert a_cum[-1] == len(aq) and w_cum[-2] == len(wq)
    o_step = min(st for st in range(NN) if a_cum[st] > 8 * 12)
    late = []; seen = set()
    for n, (st, j) in enumerate(groups):
        normal = st < NN
        if normal and j == 0:
            vmq = aq[(a_cum[st - 1] if st else 0):a_cum[st]] + wq[(w_cum[st - 1] if st else 0):w_cum[st]]
            for x in vmq:
                kind, z = x[1]
                assert z <= st + (RA - 1 if kind == "a" else NS - 1)
            if st == NN - 1:
                vmq += [(f"buffer_load_dwordx4 {v(vX + 4 * jp, 4)}, v{vO}, {X}, 0 offen offset:{64 * jp}", "x") for jp in range(4)]
            if st == 1 and NS > 4: late += [f"v_add_u32 v{vT2[z]}, 65536, v{vT[z]}" for z in range(8)]
            if st == 2:
                S.wait_tags("o"); flag_store(sFh, 32)
            if st == o_step - 2: S(f"buffer_load_dword v48, v{vP8}, {WS}, s{sFhr} offen offset:32 sc1", "poll")
            if st == o_step: poll8(32, "po")
            kvm = 0
            if st % 2 == 0 and st and steps_t: T.commit()
        if normal and j == 5:
            need_w = [("w", z) for z in range(st + 1, (st + 2) if st < NN - 1 else NST)]
            S.need(set(), need_w, ds0=True); S("s_barrier")
        regs_b = [r(bbuf2(n, kk), 4) for kk in range(2)]
        regs_a = [r(abuf2(st, kk, i), 4) for kk in range(2) for i in range(4)] if st not in seen else []
        seen.add(st)
        S.need_txt(*(regs_b + regs_a))
        if normal and j == 4 and st % 2 == 1 and steps_t: T.take()
        if n == len(groups) - fa and rsplit <= 2:
            S.wait_tags(("p", rsplit - 1)); flags(0)
        if pa and n == len(groups) - pa: S(pload(0), "poll")
        fill = treads2(n + 3)
        if normal:
            want = (len(vmq) * (j + 1) + 7) // 8
            fill = fill + vmq[kvm:want]; kvm = want
        ms = []
        order = range(4) if n % 2 == 0 else reversed(range(4))
        for q, i in enumerate(order):
            for z, kk in enumerate((0, 1) if q % 2 == 0 else (1, 0)):
                c = v(acc2(i, j), 4)
                cin = "0" if (st == 0 and z == 0) else c
                ms.append(f"{MF16} {c}, {r(bbuf2(n, kk), 4)}, {r(abuf2(st, kk, i), 4)}, {cin}")
        k = 0
        for q, m in enumerate(ms):
            S(m)
            want = min(len(fill), (len(fill) * (q + 1) + 6) // 7)
            while k < want:
                em(fill[k]); k += 1
            if late and q >= 2: em(late.pop(0))
        if not normal and st == NST - 1 and j % 2 == 1: late += send(j >> 1)
    stamp()
    lastsend = late
    if not (pa and "ldfirst" in dbg):
        for x in late: em(x)
        lastsend = []
    def add_bf16(src, jp):
        for hf in range(2):
            a0 = acc2(0, 2 * jp + hf); s0 = src + 4 * jp + 2 * hf
            S(f"v_lshlrev_b32 v20, 16, v{s0}\nv_and_b32 v21, 0xffff0000, v{s0}\nv_lshlrev_b32 v22, 16, v{s0+1}\nv_and_b32 v23, 0xffff0000, v{s0+1}")
            S(f"v_pk_add_f32 {v(a0, 2)}, {v(a0, 2)}, v[20:21]\nv_pk_add_f32 {v(a0+2, 2)}, {v(a0+2, 2)}, v[22:23]")
    def poll3(off, lab):
        tst = f"v_and_b32 v24, v24, v25\nv_and_b32 v24, v24, v26\nv_readfirstlane_b32 s{t0}, v24\ns_cmp_eq_u32 s{t0}, 1"
        spin(lab, tst, pload(off), tst)
    def ploads(jps):
        for jp in jps:
            for sl in range(3):
                S(f"buffer_load_dwordx4 {v(52 + 16 * sl + 4 * jp, 4)}, v{vL}, {WS}, s{sPo + sl} offen offset:{1024 * jp} sc1")
    def final(jp):
        for sl in range(3): add_bf16(52 + 16 * sl, jp)
        a0, a1 = acc2(0, 2 * jp), acc2(0, 2 * jp + 1); b = vX + 4 * jp
        for x in pack2(b, a0, a1): S(x)
        S(f"v_permlane16_swap_b32 v{b}, v{b+2}\nv_permlane16_swap_b32 v{b+1}, v{b+3}")
        S(f"buffer_store_dwordx4 {v(b, 4)}, v{vO}, {OUT}, 0 offen offset:{64 * jp}")
    def resid():
        for jp in range(4):
            b = vX + 4 * jp
            S(f"v_permlane16_swap_b32 v{b}, v{b+2}\nv_permlane16_swap_b32 v{b+1}, v{b+3}")
        for jp in range(4): add_bf16(vX, jp)
    stamp(2)
    if rsplit == 4:
        resid()
        S.wait_tags(("p", 3)); flags(0)
        stamp()
        S(pload(0), "poll"); poll3(0, "pa")
        stamp()
        ploads(range(4))
        for jp in range(4): final(jp)
    else:
        if rsplit == 3:
            S.wait_tags(("p", 2)); flags(0)
        stamp(2)
        if pa:
            poll3(0, "pa"); ploads(range(rsplit))
            for x in lastsend: em(x)
            resid()
            S.wait_tags(("p", 3)); flags(64)
            stamp(); stamp()
        else:
            S(pload(0), "poll")
            resid()
            S.wait_tags(("p", 3)); flags(64)
            stamp()
            poll3(0, "pa")
            stamp()
            ploads(range(rsplit))
        S(pload(64), "poll")
        for jp in range(rsplit - 1): final(jp)
        stamp(2)
        poll3(64, "pb")
        stamp(2)
        ploads(range(rsplit, 4))
        for jp in range(rsplit - 1, 4): final(jp)
    stamp()
    if timing: A("s_waitcnt vmcnt(0)")
    stamp()
    T.dump(4, 5, WS_TIME + tslot * TSLOT, sW, 0, sd=8)
    A.label(f"L_end_{name}")
    A("s_endpgm")
    return A.text(), LDS_BYTES
```

```python
import hazard
class Sched:
    def __init__(self, A):
        self.A = A
        self.vm = []
        self.ds = []
    def _wait(self, nvm, nds):
        parts = []
        if nvm is not None:
            n = min(nvm, 63); parts.append(f"vmcnt({n})")
            self.vm = self.vm[len(self.vm) - n:] if n else []
        if nds is not None:
            n = min(nds, 15); parts.append(f"lgkmcnt({n})")
            self.ds = self.ds[len(self.ds) - n:] if n else []
        if parts: self.A("s_waitcnt " + " ".join(parts))
    def _younger(self, lst, pred):
        last = None
        for i, e in enumerate(lst):
            if pred(e): last = i
        return None if last is None else len(lst) - 1 - last
    def need(self, regs, tags=(), ds0=False):
        nvm = self._younger(self.vm, lambda e: (e[0] & regs) or e[1] in tags)
        nds = self._younger(self.ds, lambda e: e[0] & regs)
        if ds0 and self.ds: nds = 0
        self._wait(nvm, nds)
    def need_txt(self, *ops, tags=(), ds0=False):
        r = set()
        for o in ops: r |= hazard.regs(o)
        self.need(r, tags, ds0)
    def wait_tags(self, *tags, ds0=False):
        self.need(set(), tags, ds0)
    def drained(self):
        self.vm = []; self.ds = []
    def __call__(self, text, tag=None):
        for line in text.split("\n"):
            x = hazard.parse(line)
            if x is None:
                self.A(line); continue
            if x.op == "s_waitcnt":
                raise ValueError("use need()/wait_tags()")
            regs = {q for q in (x.r | x.w) if q[0] in "va"}
            if regs: self.need(regs)
            self.A(line)
            if x.kind == "vmem": self.vm.append(({q for q in x.w if q[0] in "va"}, tag))
            elif x.kind == "ds": self.ds.append(({q for q in x.w if q[0] in "va"}, tag))
def interleave(S, main, fill, every=1, start=0, per=1):
    k = 0
    def em(x):
        if isinstance(x, tuple): S(x[0], x[1])
        elif callable(x): x()
        else: S(x)
    for n, m in enumerate(main):
        em(m)
        if n >= start and (n - start) % every == 0:
            for _ in range(per):
                if k < len(fill): em(fill[k]); k += 1
    while k < len(fill):
        em(fill[k]); k += 1
```

```python
from enc import *
from build2 import *
build2("t_0.s", timing=1, merge=4, rsplit=2, fa=4, b2late=3)
add_enc("t_0.s", "d_0.s", (1, 0, "min"), (1, 0, "min"), 0)
add_enc("t_0.s", "d_1.s", (1, 0, "min"), (1, 5, "max"), 20)
add_enc("t_0.s", "d_2.s", (1, 5, "max"), (1, 6, "max"), 20)
add_enc("t_0.s", "d_3.s", (1, 6, "max"), (1, 8, "max"), 20)
add_enc("t_0.s", "d_4.s", (1, 8, "max"), (1, 9, "max"), 20)
add_enc("t_0.s", "d_5.s", (1, 9, "max"), (1, 13, "max"), 20)
```
